```python
import torch

def _softmax(x, axis=-1):
    return torch.softmax(x, dim=axis)
def _gelu(x):
    return torch.nn.functional.gelu(x, approximate="tanh")
def _silu(x):
    return torch.nn.functional.silu(x)
def _sigmoid(x):
    return torch.sigmoid(x)
def _layernorm(x, axis=-1, eps=1e-5):
    m = x.mean(dim=axis, keepdim=True)
    v = x.var(dim=axis, keepdim=True, unbiased=False)
    return (x - m) / torch.sqrt(v + eps)
def _scatter_add(tgt, idx, src, axis=0):
    return tgt.clone().index_add_(axis, idx, src)
def _segment_sum(src, seg, n):
    out = torch.zeros((n,) + src.shape[1:], dtype=src.dtype)
    return out.index_add_(0, seg, src)
def _pad(x, pw):
    flat = tuple(v for pair in reversed(pw) for v in pair)
    return torch.nn.functional.pad(x, flat)

kernel_name = 'recurrent_scan__spectral_fnet__mixer_token_mlp__prompt'

def setup_inputs():

    _w = (lambda a: (lambda t: t.to(torch.bfloat16) if t.is_floating_point() else t)(torch.as_tensor(a)))
    def _A_setup():
        B, S, D = 1, 2048, 512
        ns = torch.arange(S)[:, None] * torch.arange(S)[None, :]
        nd = torch.arange(D)[:, None] * torch.arange(D)[None, :]
        Ws_re = torch.cos(-2.0 * torch.pi * ns / S).to(float)
        Ws_im = torch.sin(-2.0 * torch.pi * ns / S).to(float)
        Wd_re = torch.cos(-2.0 * torch.pi * nd / D).to(float)
        Wd_im = torch.sin(-2.0 * torch.pi * nd / D).to(float)
        return {
            "x": _w((lambda *s: torch.randn(*s, dtype=torch.bfloat16) * 0.05)(B, S, D)),
            "dft_seq_re": _w(Ws_re),
            "dft_seq_im": _w(Ws_im),
            "dft_hid_re": _w(Wd_re),
            "dft_hid_im": _w(Wd_im),
        }
    _A_in = _A_setup()

    def _B_setup():
        B, S, D, F = 1, 2048, 512, 1792
        return {
            "x": _w((lambda *s: torch.randn(*s, dtype=torch.bfloat16) * 0.05)(B, S, D)),
            "w1": _w((lambda *s: torch.randn(*s, dtype=torch.bfloat16) * 0.2)(S, F) * (S ** -0.5)),
            "b1": _w((lambda *s: torch.randn(*s, dtype=torch.bfloat16) * 3.2)(F) * 0.02),
            "w2": _w((lambda *s: torch.randn(*s, dtype=torch.bfloat16) * 0.05)(F, S) * (F ** -0.5)),
            "b2": _w((lambda *s: torch.randn(*s, dtype=torch.bfloat16) * 0.05)(S) * 0.02),
        }
    _B_in = _B_setup()

    return {
        "A_x": _A_in["x"],
        "A_dft_seq_re": _A_in["dft_seq_re"],
        "A_dft_seq_im": _A_in["dft_seq_im"],
        "A_dft_hid_re": _A_in["dft_hid_re"],
        "A_dft_hid_im": _A_in["dft_hid_im"],
        "B_x": _B_in["x"],
        "B_w1": _B_in["w1"],
        "B_b1": _B_in["b1"],
        "B_w2": _B_in["w2"],
        "B_b2": _B_in["b2"],
    }

def reference(A_x, A_dft_seq_re, A_dft_seq_im, A_dft_hid_re, A_dft_hid_im, B_x, B_w1, B_b1, B_w2, B_b2):
    def _A_ref(x, dft_seq_re, dft_seq_im, dft_hid_re, dft_hid_im):
        a = torch.einsum("bsd,ed->bse", x, dft_hid_re)
        b = torch.einsum("bsd,ed->bse", x, dft_hid_im)
        y = torch.einsum("ts,bse->bte", dft_seq_re, a) - torch.einsum("ts,bse->bte", dft_seq_im, b)
        return y

    def _B_ref(x, w1, b1, w2, b2):
        B, S, D = x.shape
        h = _layernorm(x, axis=-1)
        u = torch.einsum("bsd,sf->bdf", h, w1) + b1
        u = _gelu(u)
        y = torch.einsum("bdf,fs->bds", u, w2) + b2
        return (lambda x, *d: x.permute(*d))(y, 0, 2, 1)

    x = A_x
    xn = _layernorm(x, axis=-1)
    s = _A_ref(xn, A_dft_seq_re, A_dft_seq_im, A_dft_hid_re, A_dft_hid_im)
    g = _silu(_B_ref(xn, B_w1, B_b1, B_w2, B_b2))
    return x + s * g
```

```python
import re

REG_RE = re.compile(r"(?<![\w.])([vas])(?:\[(\d+):(\d+)\]|(\d+))(?![\w])|\b(vcc|exec|m0)\b")
TRANS = ("v_exp_f32", "v_log_f32", "v_rcp_f32", "v_rsq_f32", "v_sqrt_f32", "v_sin_f32", "v_cos_f32")


def regs_of(text):
    out = []
    for m in REG_RE.finditer(text):
        if m.group(5):
            out.append((m.group(5), 0))
        elif m.group(2) is not None:
            out += [(m.group(1), i) for i in range(int(m.group(2)), int(m.group(3)) + 1)]
        else:
            out.append((m.group(1), int(m.group(4))))
    return out


class Ins:
    def __init__(self, text):
        self.text = text
        t = text.split(";")[0].strip()
        self.label = t.endswith(":")
        self.op = t.split()[0] if t else ""
        rest = t[len(self.op):].strip()
        ops = [o.strip() for o in re.split(r",(?![^\[]*\])", rest)] if rest else []
        self.ops = ops
        op = self.op
        self.defs, self.uses = set(), set()
        self.kind = "other"
        self.a = self.b = self.c = set()
        if self.label or not op or op.startswith("."):
            self.kind = "none"
            return
        R = lambda s: set(regs_of(s))
        allr = [R(o) for o in ops]
        if op.startswith("v_mfma"):
            self.kind = "mfma"
            self.passes = 8 if "32x32" in op else 4
            self.defs, self.a, self.b, self.c = allr[0], allr[1], allr[2], allr[3]
            self.uses = self.a | self.b | self.c
        elif op.startswith("v_"):
            self.kind = "valu"
            self.defs = set(allr[0])
            self.uses = set().union(*allr[1:]) if len(allr) > 1 else set()
            if op.startswith("v_permlane"):
                self.defs = allr[0] | allr[1]
                self.uses = set(self.defs)
            if op.startswith(("v_fmac", "v_dot2c", "v_writelane")) or "_dpp" in op:
                self.uses |= allr[0]
            if op.startswith(("v_add_co", "v_addc_co", "v_sub_co")):
                self.defs |= allr[1]
        elif op.startswith("ds_"):
            self.kind = "ds"
            if "read" in op:
                self.defs, self.uses = allr[0], set().union(*allr[1:])
            else:
                self.uses = set().union(*allr)
        elif op.startswith(("buffer_", "global_")):
            self.kind = "vmem"
            self.lds = bool(re.search(r"\blds\b", t))
            if "load" in op and not self.lds:
                self.defs, self.uses = allr[0], set().union(*allr[1:])
            else:
                self.uses = set().union(*allr) if allr else set()
            if self.lds:
                self.uses.add(("m0", 0))
            self.wide_store = "store" in op and ("x4" in op or "x3" in op)
            if self.wide_store:
                self.data = allr[0] if op.startswith("buffer_") else allr[1]
        elif op.startswith("s_"):
            self.kind = "salu"
            nodst = ("s_cmp", "s_waitcnt", "s_nop", "s_barrier", "s_branch", "s_cbranch", "s_sleep", "s_endpgm", "s_setprio", "s_bitcmp")
            if not op.startswith(nodst) and allr:
                self.defs, self.uses = allr[0], set().union(*allr[1:]) if len(allr) > 1 else set()
            else:
                self.uses = set().union(*allr) if allr else set()
        self.states = int(ops[0], 0) + 1 if op == "s_nop" else 1

    def vgprs(self, s):
        return {r for r in s if r[0] in "va" and len(r[0]) == 1}


def need(p, c):
    n = 0
    isv = lambda s: {r for r in s if r[0] in ("v", "a")}
    iss = lambda s: {r for r in s if r[0] in ("s", "vcc")}
    if p.kind == "valu":
        vd, sd = isv(p.defs), iss(p.defs)
        if c.kind == "mfma" and vd & c.uses:
            n = max(n, 2)
        if c.kind == "valu":
            if vd & c.uses:
                if "_dpp" in c.op or c.op.startswith("v_permlane"):
                    n = max(n, 2)
                if c.op.startswith(("v_readlane", "v_readfirstlane")):
                    n = max(n, 1)
                if p.op.startswith(TRANS):
                    n = max(n, 1)
            if sd & c.uses:
                n = max(n, 4 if c.op.startswith(("v_readlane", "v_writelane")) else 2)
        if p.op.startswith("v_dot2") and vd & (c.uses | c.defs):
            chain = c.op == p.op and len(c.ops) == 4 and not (vd & set(regs_of(c.ops[1] + "," + c.ops[2])))
            if not chain:
                n = max(n, 3)
        if c.kind == "vmem" and sd & c.uses:
            n = max(n, 5)
    if p.kind == "mfma":
        big = p.passes == 8
        if c.kind == "mfma":
            if p.defs & (c.a | c.b):
                n = max(n, 12 if big else 8)
            if p.defs & c.c and not (p.defs == c.c and p.passes == c.passes):
                n = max(n, 10 if big else 6)
            if p.defs & c.defs and not (p.defs & c.c):
                n = max(n, 12 if big else 8)
        elif c.kind in ("valu", "ds", "vmem"):
            if p.defs & (c.uses | c.defs):
                n = max(n, 12 if big else 8)
            if c.kind == "valu" and p.c & c.defs:
                n = max(n, 7 if big else 3)
    if p.kind == "salu" and ("m0", 0) in p.defs and c.kind == "vmem" and c.lds:
        n = max(n, 1)
    if p.kind == "vmem" and getattr(p, "wide_store", False) and p.data & c.defs:
        n = max(n, 2)
    return n


WINDOW = 14


class Asm:
    def __init__(self):
        self.lines = []
        self.vm = []
        self.lg = []

    def __call__(self, text):
        for t in text.split("\n"):
            t = t.strip()
            if t:
                self.lines.append(t)

    def label(self, name):
        self.lines.append(name + ":")

    def vmem(self, text, tag=None):
        self(text)
        self.vm.append(tag)

    def ds(self, text, tag=None):
        self(text)
        self.lg.append(tag)

    def _wait(self, q, tag, name, cap):
        idx = [i for i, t in enumerate(q) if t == tag]
        if not idx:
            return None
        n = len(q) - 1 - idx[-1]
        n = min(n, cap)
        del q[: len(q) - n]
        return f"{name}({n})"

    def wait(self, vm=None, lg=None):
        parts = []
        if vm is not None:
            if vm == "all":
                self.vm.clear(); parts.append("vmcnt(0)")
            else:
                p = self._wait(self.vm, vm, "vmcnt", 63)
                if p: parts.append(p)
        if lg is not None:
            if lg == "all":
                self.lg.clear(); parts.append("lgkmcnt(0)")
            else:
                p = self._wait(self.lg, lg, "lgkmcnt", 15)
                if p: parts.append(p)
        if parts:
            self("s_waitcnt " + " ".join(parts))

    def snapshot(self):
        return list(self.vm), list(self.lg)

    def restore(self, s):
        self.vm, self.lg = list(s[0]), list(s[1])

    def finish(self):
        ins = [Ins(t) for t in self.lines]
        out = []
        hist = []
        at_branch = {}
        cur = []

        def required(h, c):
            return max([need(p, c) - d for p, d in h] + [0])

        def advance(h, c):
            return [(p, d + c.states) for p, d in h if d + c.states < WINDOW] + [(c, 0)]

        hs = [[]]
        seen = set()
        back = []
        for c in ins:
            if c.kind == "none":
                if c.label:
                    name = c.text.split(":")[0]
                    seen.add(name)
                    hs = hs + at_branch.pop(name, [])
                out.append(c)
                continue
            n = max([required(h, c) for h in hs] + [0])
            if n > 0:
                nop = Ins(f"s_nop {n - 1}")
                out.append(nop)
                hs = [advance(h, nop) for h in hs]
            out.append(c)
            hs = [advance(h, c) for h in hs]
            uniq = {}
            for h in hs:
                uniq[tuple((id(p), d) for p, d in h)] = h
            hs = list(uniq.values())
            if c.op.startswith(("s_branch", "s_cbranch")):
                tgt = c.ops[0]
                if tgt in seen:
                    back.append((tgt, [list(h) for h in hs]))
                else:
                    at_branch.setdefault(tgt, []).extend([list(h) for h in hs])
                if c.op == "s_branch":
                    hs = []
            if c.op == "s_endpgm":
                hs = []
        pos = {c.text.split(":")[0]: i for i, c in enumerate(out) if c.label}
        for tgt, hl in back:
            for h in hl:
                for c in out[pos[tgt]:pos[tgt] + 2 * WINDOW]:
                    if c.kind == "none":
                        continue
                    assert required(h, c) == 0, f"back-edge hazard at {tgt}: {c.text}"
                    h = advance(h, c)
                    if c.op in ("s_branch", "s_endpgm"):
                        break
        return [c.text if (c.label or c.text.startswith(".")) else "  " + c.text for c in out]
```

```python
import struct
import sys
from asmlib import Asm

NAME = "recurrent_scan__spectral_fnet__mixer_token_mlp__prompt"
KERNEL = NAME + "_kernel"

WS_H, WS_Z, WS_G, WS_S = 0x0, 0x200000, 0x400000, 0x600000
WS_NONCE = 0x710000
WS_HF, WS_ZF, WS_GF, WS_SF = 0x800000, 0x880000, 0x8C0000, 0x940000
WS_STAMP = 0x980000
WS_SIZE = 0xA00000

L_HROWS, HPITCH = 0, 1088
L_XROWS = 8704
L_ZPL = 16896
L_RING, L_WAVE = 32768, 32768
L_TAIL = 28672
LDS_BYTES = 163840

SRD_X, SRD_WA, SRD_W2, SRD_WS, SRD_OUT, SRD_B1, SRD_B2 = 4, 8, 12, 16, 20, 24, 28
sFlag, sX, sIdx, sFt, sDt1, sTt, sDt2, sC = 32, 33, 34, 35, 36, 37, 38, 39
sWoff, sWbase, sWend, sWstep = 40, 41, 42, 43
sAoff, sAbase, sAend = 44, 45, 46
sLw, s1024, sMask = 47, 48, 49
sT = 50
sL32 = 60
sSpin, sRot1, sRot2, sPass = 62, 63, 64, 65
sOnes, sWm, sWn, s2048 = 66, 67, 68, 69
sK0 = 70
sSpecial, sMir = 78, 79
sStamp = 80
sClk = 96

vLane, vWd0, vWd1, vTrA, vTrB, vA0, vA1, vL16 = 0, 1, 2, 3, 4, 5, 6, 7
vFlagV, vPoll, vPa, vT0, vT1, vT2, vT3, vT4 = 8, 9, 10, 11, 12, 13, 14, 15
vAcc = 16
vRing = 80
vTmp = 176


def f2i(x):
    return struct.unpack("<I", struct.pack("<f", x))[0]


def hexf(x):
    return "0x%08x" % f2i(x)


def srd(n):
    return f"s[{n}:{n+3}]"


def v(a, n=1):
    return f"v{a}" if n == 1 else f"v[{a}:{a+n-1}]"


def ag(a, n=1):
    return f"a{a}" if n == 1 else f"a[{a}:{a+n-1}]"


LO = "op_sel:[0,0] op_sel_hi:[1,0]"
HI = "op_sel:[0,1] op_sel_hi:[1,1]"
NEG1 = "neg_lo:[0,1] neg_hi:[0,1]"


class Gen:
    def __init__(self, **kw):
        self.p = dict(FS=128, R=8, nA=4, nB=6, stamps=False, xflags="", wflags="", w2pre=8, w2mid=3,
                      sleep=2, prefetch_code=True, mimic=True, pollgap=3, spin=200000)
        self.p.update(kw)
        self.a = Asm()
        self.nlab = 0
        self.nstamp = 0

    def lab(self, s):
        self.nlab += 1
        return f"L{self.nlab}_{s}"

    def stamp(self, k):
        if not self.p["stamps"]:
            return
        a = self.a
        a(f"s_memrealtime s[{sClk}:{sClk+1}]")
        a.wait(lg="all")
        a(f"s_mov_b32 s{sStamp+k}, s{sClk}")

    def unpack(self, lo, hi, src):
        self.a(f"v_lshlrev_b32 {v(lo)}, 16, {v(src)}")
        self.a(f"v_and_b32 {v(hi)}, s{sMask}, {v(src)}")

    def round_pair(self, pair, tmp):
        self.a(f"v_cvt_pk_bf16_f32 {v(tmp)}, {v(pair)}, {v(pair+1)}")
        self.unpack(pair, pair + 1, tmp)

    def reduce_wave(self, regs, sdst, fill=()):
        a = self.a
        fill = list(fill)
        for ctl in ("quad_perm:[1,0,3,2] row_mask:0xf", "quad_perm:[2,3,0,1] row_mask:0xf", "row_half_mirror row_mask:0xf",
                    "row_mirror row_mask:0xf", "row_bcast:15 row_mask:0xa", "row_bcast:31 row_mask:0xc"):
            for r in regs:
                a(f"v_add_f32_dpp {v(r)}, {v(r)}, {v(r)} {ctl} bank_mask:0xf")
            if fill and len(regs) < 3:
                a(fill.pop(0))
        for f in fill:
            a(f)
        for k, r in enumerate(regs):
            a(f"v_readlane_b32 s{sdst+k}, {v(r)}, 63")

    def dma_slot(self, lds_slot, tag, srdn=SRD_WA):
        a = self.a
        fl = self.p["wflags"]
        a(f"s_add_u32 m0, s{sLw}, {lds_slot*2048}" if lds_slot else f"s_mov_b32 m0, s{sLw}")
        a.vmem(f"buffer_load_dwordx4 {v(vWd0)}, {srd(srdn)}, s{sWoff} offen {fl} lds", tag)
        a(f"s_add_u32 m0, m0, s{s1024}")
        a.vmem(f"buffer_load_dwordx4 {v(vWd1)}, {srd(srdn)}, s{sWoff} offen {fl} lds", tag)
        a(f"s_add_u32 s{sWoff}, s{sWoff}, s{sWstep}")
        a(f"s_cmp_eq_u32 s{sWoff}, s{sWend}")
        a(f"s_cselect_b32 s{sWoff}, s{sWbase}, s{sWoff}")

    def tr_slot(self, lds_slot, areg, jstride, tag):
        for jm, addr in ((0, vTrA), (1, vTrB)):
            for jj in range(2):
                self.a.ds(f"ds_read_b64_tr_b16 {ag(areg+4*jm+2*jj, 2)}, {v(addr)} offset:{lds_slot*2048+jj*jstride}", tag)

    def act_load(self, i, tag):
        a = self.a
        r = vRing + 8 * (i % self.p["R"])
        a.vmem(f"buffer_load_dwordx4 {v(r,4)}, {v(vA0)}, {srd(SRD_WS)}, s{sAoff} offen sc1", tag)
        a.vmem(f"buffer_load_dwordx4 {v(r+4,4)}, {v(vA1)}, {srd(SRD_WS)}, s{sAoff} offen sc1", tag)
        a(f"s_add_u32 s{sAoff}, s{sAoff}, s{s2048}")
        a(f"s_cmp_eq_u32 s{sAoff}, s{sAend}")
        a(f"s_cselect_b32 s{sAoff}, s{sAbase}, s{sAoff}")

    def flag_store(self, addr, nrep):
        a = self.a
        a(f"s_mov_b64 exec, {(1 << nrep) - 1}")
        a.vmem(f"buffer_store_dword {v(vFlagV)}, {v(addr)}, {srd(SRD_WS)}, 0 offen sc1", "flag")
        a("s_mov_b64 exec, -1")

    def poll_issue(self, tag):
        self.a.vmem(f"buffer_load_dword {v(vPoll)}, {v(vPa)}, {srd(SRD_WS)}, 0 offen sc1", tag)

    def poll_check(self, tag):
        a = self.a
        ok, retry = self.lab("ok"), self.lab("retry")
        a.wait(vm=tag)
        a(f"v_cmp_ne_u32 vcc, s{sFlag}, {v(vPoll)}")
        a(f"s_cbranch_vccz {ok}")
        a.label(retry)
        if self.p["sleep"]:
            a(f"s_sleep {self.p['sleep']}")
        a(f"buffer_load_dword {v(vPoll)}, {v(vPa)}, {srd(SRD_WS)}, 0 offen sc1")
        a(f"s_add_u32 s{sSpin}, s{sSpin}, 1")
        a(f"s_cmp_gt_u32 s{sSpin}, {self.p['spin']}")
        a("s_waitcnt vmcnt(0)")
        a(f"s_cbranch_scc1 {ok}")
        a(f"v_cmp_ne_u32 vcc, s{sFlag}, {v(vPoll)}")
        a(f"s_cbranch_vccnz {retry}")
        a.label(ok)

    def sincos(self, ang, cdst, sdst):
        if cdst is not None:
            self.a(f"v_cos_f32 {v(cdst)}, {v(ang)}")
        if sdst is not None:
            self.a(f"v_sin_f32 {v(sdst)}, {v(ang)}")

    def packed_table(self, step, base, mults, cdst, sdst, t):
        a = self.a
        for k in range(0, len(mults), 2):
            for i in range(2):
                m = mults[k + i]
                if m == 0:
                    a(f"v_mov_b32 {v(t+i)}, {v(base)}")
                else:
                    a(f"v_fmamk_f32 {v(t+i)}, {v(step)}, {hexf(m)}, {v(base)}")
            for i in range(2):
                self.sincos(t + i, t + 2 + i, t + 4 + i)
            a(f"v_cvt_pk_f16_f32 {v(cdst+k//2)}, {v(t+2)}, {v(t+3)}")
            a(f"v_cvt_pk_f16_f32 {v(sdst+k//2)}, {v(t+4)}, {v(t+5)}")

    def w_addresses(self, pitch_s, perm, swap_s):
        a = self.a
        a(f"v_lshrrev_b32 {v(vT0)}, 3, {v(vLane)}")
        a(f"v_mul_lo_u32 {v(vWd0)}, {pitch_s}, {v(vT0)}")
        a(f"v_lshlrev_b32 {v(vT0)}, 1, {v(vT0)}")
        a(f"v_and_b32 {v(vT0)}, 4, {v(vT0)}")
        a(f"v_xor_b32 {v(vT0)}, {v(vT0)}, {v(vLane)}")
        a(f"v_and_b32 {v(vT0)}, 7, {v(vT0)}")
        a(f"v_lshl_add_u32 {v(vWd0)}, {v(vT0)}, 4, {v(vWd0)}")
        a(f"s_lshl_b32 s{sT}, {pitch_s}, 3")
        a(f"v_add_u32 {v(vWd1)}, s{sT}, {v(vWd0)}")
        self.tr_addresses(perm, swap_s)

    def tr_addresses(self, hstride, swap_s):
        a = self.a
        a(f"v_bfe_u32 {v(vT0)}, {v(vLane)}, 2, 2")
        a(f"v_lshlrev_b32 {v(vTrA)}, 7, {v(vT0)}")
        a(f"v_lshrrev_b32 {v(vT1)}, 5, {v(vLane)}")
        a(f"v_mul_lo_u32 {v(vT1)}, {hstride}, {v(vT1)}")
        a(f"v_add_u32 {v(vTrA)}, {v(vTrA)}, {v(vT1)}")
        a(f"v_lshlrev_b32 {v(vT0)}, 5, {v(vT0)}")
        a(f"v_and_b32 {v(vT0)}, 64, {v(vT0)}")
        a(f"v_lshlrev_b32 {v(vT1)}, 1, {v(vLane)}")
        a(f"v_and_b32 {v(vT1)}, 32, {v(vT1)}")
        a(f"v_and_b32 {v(vT2)}, 3, {v(vLane)}")
        a(f"v_lshlrev_b32 {v(vT2)}, 3, {v(vT2)}")
        a(f"v_or3_b32 {v(vT0)}, {v(vT0)}, {v(vT1)}, {v(vT2)}")
        a(f"s_lshl_b32 s{sT}, {swap_s}, 6")
        a(f"v_xor_b32 {v(vT0)}, s{sT}, {v(vT0)}")
        a(f"v_add3_u32 {v(vTrA)}, {v(vTrA)}, {v(vT0)}, s{sLw}")
        a(f"v_xor_b32 {v(vTrB)}, 64, {v(vTrA)}")

    def w2_stream(self):
        a = self.a
        a(f"s_mul_i32 s{sWbase}, s3, {448*4096}")
        a(f"s_lshl_b32 s{sT}, s{sTt}, 7")
        a(f"s_add_u32 s{sWbase}, s{sWbase}, s{sT}")
        a(f"s_mov_b32 s{sWstep}, 65536")
        a(f"s_add_u32 s{sWend}, s{sWbase}, {28*65536}")
        a(f"s_lshl_b32 s{sT}, s{sRot2}, 16")
        a(f"s_add_u32 s{sWoff}, s{sWbase}, s{sT}")

    def prologue(self):
        a, p = self.a, self.p
        a("s_cmp_ge_u32 s2, 256")
        a("s_cbranch_scc1 L_end")
        for dst, off in ((SRD_X, 0), (SRD_WS, 96), (SRD_WA, 48), (SRD_W2, 64), (SRD_B1, 56), (SRD_B2, 72), (SRD_OUT, 80)):
            a(f"s_load_dwordx2 s[{dst}:{dst+1}], s[0:1], {off}")
        if p["stamps"]:
            a(f"s_memrealtime s[{sClk}:{sClk+1}]")
        if p["prefetch_code"]:
            a(f"s_getpc_b64 s[{sT}:{sT+1}]")
            a(f"v_lshlrev_b32 {v(vT0)}, 7, v0")
            a(f"v_min_u32 {v(vT0)}, L_end-{KERNEL}-128, {v(vT0)}")
            a(f"v_mov_b32 {v(vT2)}, s{sT+1}")
            a(f"v_add_co_u32 {v(vT1)}, vcc, s{sT}, {v(vT0)}")
            a(f"v_addc_co_u32 {v(vT2)}, vcc, 0, {v(vT2)}, vcc")
            a.vmem(f"global_load_dword v255, {v(vT1,2)}, off", "code")
        a(f"v_lshrrev_b32 {v(vT0)}, 6, v0")
        a(f"v_and_b32 {v(vLane)}, 63, v0")
        a(f"v_readfirstlane_b32 s3, {v(vT0)}")
        a(f"v_lshlrev_b32 {v(vL16)}, 4, {v(vLane)}")
        for n, size in ((SRD_X, 2048*1024), (SRD_WS, WS_SIZE), (SRD_W2, 1792*4096), (SRD_B1, 3584), (SRD_B2, 4096), (SRD_OUT, 2048*1024)):
            a(f"s_mov_b32 s{n+2}, {size}")
            a(f"s_mov_b32 s{n+3}, 0x20000")
        a(f"s_mov_b32 s{SRD_WA+2}, {2048*3584}")
        a(f"s_mov_b32 s{SRD_WA+3}, 0x20000")
        a(f"s_lshl_b32 s{sT+2}, s2, 13")
        a(f"s_lshl_b32 s{sT+3}, s3, 11")
        a(f"s_add_u32 s{sT+2}, s{sT+2}, s{sT+3}")
        a(f"s_and_b32 s{sX}, s2, 7")
        a(f"s_lshr_b32 s{sIdx}, s2, 3")
        a("s_waitcnt lgkmcnt(0)")
        a.vmem(f"buffer_load_dwordx4 v[16:19], {v(vL16)}, {srd(SRD_X)}, s{sT+2} offen {p['xflags']}", "x")
        a.vmem(f"buffer_load_dwordx4 v[20:23], {v(vL16)}, {srd(SRD_X)}, s{sT+2} offen offset:1024 {p['xflags']}", "x")
        if p["stamps"]:
            a(f"s_mov_b32 s{sStamp}, s{sClk}")
        a(f"s_mov_b32 s{sT+9}, {WS_NONCE}")
        a(f"s_load_dword s{sFlag}, s[{SRD_WS}:{SRD_WS+1}], s{sT+9}")
        a(f"s_mul_i32 s{sT}, s{sIdx}, 37")
        a(f"s_lshr_b32 s{sT}, s{sT}, 8")
        a(f"s_mul_i32 s{sT+1}, s{sT}, 7")
        a(f"s_sub_u32 s{sT+1}, s{sIdx}, s{sT+1}")
        a(f"s_lshr_b32 s{sT+2}, s{sX}, 1")
        a(f"s_and_b32 s{sT+3}, s{sX}, 1")
        a(f"s_mul_i32 s{sFt}, s{sT+2}, 7")
        a(f"s_add_u32 s{sFt}, s{sFt}, s{sT+1}")
        a(f"s_lshl_b32 s{sT+4}, s{sT+3}, 2")
        a(f"s_add_u32 s{sDt1}, s{sT+4}, s{sT}")
        a(f"s_lshl2_add_u32 s{sT+5}, s{sT+1}, s{sT+2}")
        a(f"s_mul_i32 s{sT+5}, s{sT+5}, 293")
        a(f"s_lshr_b32 s{sT+5}, s{sT+5}, 8")
        a(f"s_lshl3_add_u32 s{sRot1}, s{sT}, s{sT+5}")
        a(f"s_add_u32 s{sRot1}, s{sRot1}, s{sT+4}")
        a(f"s_and_b32 s{sRot1}, s{sRot1}, 31")
        a(f"s_and_b32 s{sT}, s{sIdx}, 7")
        a(f"s_lshr_b32 s{sT+1}, s{sIdx}, 3")
        a(f"s_lshl3_add_u32 s{sTt}, s{sT+2}, s{sT}")
        a(f"s_add_u32 s{sDt2}, s{sT+4}, s{sT+1}")
        a(f"s_lshl2_add_u32 s{sT+5}, s{sT}, s{sT+2}")
        a(f"s_mul_i32 s{sT+5}, s{sT+5}, 7")
        a(f"s_lshr_b32 s{sT+5}, s{sT+5}, 3")
        a(f"s_mul_i32 s{sT+1}, s{sT+1}, 7")
        a(f"s_mul_i32 s{sT+3}, s{sT+3}, 3")
        a(f"s_add_u32 s{sRot2}, s{sT+5}, s{sT+1}")
        a(f"s_add_u32 s{sRot2}, s{sRot2}, s{sT+3}")
        a(f"s_sub_u32 s{sT}, s{sRot2}, 28")
        a(f"s_cselect_b32 s{sRot2}, s{sRot2}, s{sT}")
        a(f"s_lshl_b32 s{sC}, s{sX}, 2")
        a(f"s_add_u32 s{sC}, s{sC}, s{sIdx}")
        a(f"s_sub_u32 s{sC}, s{sC}, 28")
        a(f"s_lshr_b32 s{sWm}, s3, 1")
        a(f"s_and_b32 s{sWn}, s3, 1")
        a(f"s_lshl_b32 s{sLw}, s3, 15")
        a(f"s_add_u32 s{sLw}, s{sLw}, {L_RING}")
        a(f"s_mov_b32 s{s1024}, 1024")
        a(f"s_mov_b32 s{s2048}, 2048")
        a(f"s_mov_b32 s{sMask}, 0xffff0000")
        a(f"s_mov_b32 s{sOnes}, 0x3f803f80")
        a(f"s_mov_b32 s{sSpin}, 0")
        a(f"s_mov_b32 s{sL32}, 0")
        a(f"s_mov_b32 s{sL32+1}, 1")
        g, j = self.lab("gemm_stream"), self.lab("stream_done")
        a(f"s_cmp_lt_u32 s{sIdx}, 28")
        a(f"s_cbranch_scc1 {g}")
        self.w2_stream()
        a(f"s_mov_b32 s{SRD_WA}, s{SRD_W2}")
        a(f"s_mov_b32 s{SRD_WA+1}, s{SRD_W2+1}")
        a(f"s_mov_b32 s{sT+6}, 4096")
        a(f"s_mov_b32 s{sT+7}, 512")
        a(f"s_mov_b32 s{sT+8}, s{sWn}")
        a(f"s_branch {j}")
        a.label(g)
        a(f"s_mul_i32 s{sWbase}, s3, {512*3584}")
        a(f"s_lshl_b32 s{sT}, s{sFt}, 7")
        a(f"s_add_u32 s{sWbase}, s{sWbase}, s{sT}")
        a(f"s_mov_b32 s{sWstep}, {16*3584}")
        a(f"s_add_u32 s{sWend}, s{sWbase}, {32*16*3584}")
        a(f"s_mul_i32 s{sT}, s{sRot1}, {16*3584}")
        a(f"s_add_u32 s{sWoff}, s{sWbase}, s{sT}")
        a(f"s_mov_b32 s{sT+6}, 3584")
        a(f"s_mov_b32 s{sT+7}, 1024")
        a(f"s_mov_b32 s{sT+8}, s{sWm}")
        a.label(j)
        self.w_addresses(f"s{sT+6}", f"s{sT+7}", f"s{sT+8}")
        for i in range(p["nA"]):
            self.dma_slot(i, ("w", i))

    def phase0(self):
        a, p = self.a, self.p
        FS = p["FS"]
        X = (16, 20)
        F = (24, 32)
        B1c, B1s, TWc, TWs, A2, A3 = (40, 44), (48, 52), (56, 60), (64, 68), 72, 76
        t = 80
        K = 96
        M, D, RI, U = 98, 100, 102, 104
        S = (106, 107, 108, 109)
        XH = (112, 116)
        XN = (120, 124)
        vHw, vXw, vHr, vXr, vZw, vZr, vHf, vZf = 128, 129, 130, 131, 132, 133, 134, 135
        a(f"v_and_b32 {v(vT0)}, 15, {v(vLane)}")
        a(f"v_lshrrev_b32 {v(vT1)}, 4, {v(vLane)}")
        a(f"v_lshlrev_b32 {v(vT1)}, 2, {v(vT1)}")
        a(f"v_cvt_f32_u32 {v(vT2)}, {v(vT0)}")
        a(f"v_cvt_f32_u32 {v(vT1)}, {v(vT1)}")
        for hf in range(2):
            if hf:
                a(f"v_add_f32 {v(vT2)}, {hexf(16.0)}, {v(vT2)}")
            a(f"v_mul_f32 {v(vT3)}, {hexf(-1/32)}, {v(vT2)}")
            a(f"v_mul_f32 {v(vT4)}, {v(vT3)}, {v(vT1)}")
            self.packed_table(vT3, vT4, [0, 1, 2, 3, 16, 17, 18, 19], B1c[hf], B1s[hf], t)
            a(f"v_mul_f32 {v(vT3)}, {hexf(1/512)}, {v(vT2)}")
            a(f"v_mul_f32 {v(vT4)}, {v(vT3)}, {v(vT1)}")
            for i in range(4):
                self.sincos(vT4, TWc[hf] + i, TWs[hf] + i)
                if i < 3:
                    a(f"v_add_f32 {v(vT4)}, {v(vT4)}, {v(vT3)}")
        a(f"v_and_b32 {v(vT2)}, 7, {v(vT0)}")
        a(f"v_lshrrev_b32 {v(vT4)}, 3, {v(vT0)}")
        a(f"v_cvt_f32_u32 {v(vT2)}, {v(vT2)}")
        a(f"v_cvt_f32_u32 {v(vT4)}, {v(vT4)}")
        a(f"v_mul_f32 {v(vT3)}, {hexf(1/16)}, {v(vT2)}")
        a(f"v_mul_f32 {v(vT4)}, {hexf(0.25)}, {v(vT4)}")
        a(f"v_fmac_f32 {v(vT4)}, {v(vT3)}, {v(vT1)}")
        self.packed_table(vT3, vT4, [0, 1, 2, 3], A2, A2 + 2, t)
        a(f"v_cmp_eq_u32 vcc, 8, {v(vT0)}")
        a(f"v_mov_b32 {v(A3+2)}, 0")
        a(f"v_mov_b32 {v(A3+3)}, 0")
        a(f"v_mov_b32 {v(A3+1)}, 0xbc003c00")
        a(f"v_cndmask_b32 {v(A3)}, {v(A3+2)}, {v(A3+1)}, vcc")
        a(f"v_cndmask_b32 {v(A3+1)}, {v(A3+2)}, {v(A3+1)}, vcc")
        a(f"v_mov_b32 {v(K)}, {hexf(1/512)}")
        a(f"v_mov_b32 {v(K+1)}, {hexf(1e-5)}")
        a(f"s_mul_i32 s{sT}, s3, {2*HPITCH}")
        a(f"v_add_u32 {v(vHw)}, s{sT}, {v(vL16)}")
        a(f"s_lshl_b32 s{sT}, s3, 11")
        a(f"s_add_u32 s{sT+1}, s{sT}, {L_XROWS}")
        a(f"v_add_u32 {v(vXw)}, s{sT+1}, {v(vL16)}")
        a(f"v_lshl_add_u32 {v(vXr)}, {v(vLane)}, 3, s{sT+1}")
        a(f"v_bfe_u32 {v(vT1)}, {v(vLane)}, 2, 2")
        a(f"v_mul_u32_u24 {v(vHr)}, {HPITCH}, {v(vT1)}")
        a(f"v_lshrrev_b32 {v(vT1)}, 4, {v(vLane)}")
        a(f"v_lshl_add_u32 {v(vHr)}, {v(vT1)}, 5, {v(vHr)}")
        a(f"v_and_b32 {v(vT2)}, 3, {v(vLane)}")
        a(f"v_lshl_add_u32 {v(vHr)}, {v(vT2)}, 3, {v(vHr)}")
        a(f"s_lshl_b32 s{sT+1}, s3, 8")
        a(f"v_add_u32 {v(vHr)}, s{sT+1}, {v(vHr)}")
        a(f"s_add_u32 s{sT+1}, s{sT}, {L_ZPL}")
        a(f"v_lshl_add_u32 {v(vZw)}, {v(vT0)}, 3, s{sT+1}")
        a(f"v_lshrrev_b32 {v(vT2)}, 1, {v(vT1)}")
        a(f"v_lshl_add_u32 {v(vZw)}, {v(vT2)}, 2, {v(vZw)}")
        a(f"v_and_b32 {v(vT2)}, 1, {v(vT1)}")
        a(f"v_lshl_add_u32 {v(vZw)}, {v(vT2)}, 10, {v(vZw)}")
        a(f"s_lshl_b32 s{sT+1}, s3, 9")
        a(f"s_add_u32 s{sT+1}, s{sT+1}, {L_ZPL}")
        a(f"v_lshl_add_u32 {v(vZr)}, {v(vLane)}, 2, s{sT+1}")
        a(f"s_lshl_b32 s{sT}, s3, 8")
        a(f"s_add_u32 s{sT}, s{sT}, s2")
        a(f"s_mul_i32 s{sT}, s{sT}, {FS}")
        a(f"v_mul_u32_u24 {v(vT1)}, {1024*FS}, {v(vLane)}")
        a(f"s_add_u32 s{sT+1}, s{sT}, {WS_HF}")
        a(f"v_add_u32 {v(vHf)}, s{sT+1}, {v(vT1)}")
        a(f"s_add_u32 s{sT+1}, s{sT}, {WS_ZF}")
        a(f"v_add_u32 {v(vZf)}, s{sT+1}, {v(vT1)}")
        a(f"s_lshl_b32 s{sT+6}, s3, 19")
        a(f"s_lshl_b32 s{sT+7}, s2, 10")
        a(f"s_add_u32 s{sT+6}, s{sT+6}, s{sT+7}")
        a(f"s_add_u32 s{sT+7}, s{sT+6}, {1 << 18}")
        a(f"s_lshl_b32 s{sT+8}, s2, 13")
        a(f"s_lshl_b32 s{sT+9}, s3, 11")
        a(f"s_add_u32 s{sT+8}, s{sT+8}, s{sT+9}")
        a(f"s_add_u32 s{sT+8}, s{sT+8}, {WS_Z}")
        a("s_waitcnt lgkmcnt(0)")
        a(f"s_mul_i32 s{sFlag}, s{sFlag}, 0x9e3779b1")
        a(f"s_add_u32 s{sFlag}, s{sFlag}, 0x7f4a7c15")
        a(f"v_mov_b32 {v(vFlagV)}, s{sFlag}")
        self.stamp(1)
        a.wait(vm="x")
        self.stamp(2)
        sel = (LO, HI)

        def dots(dst, src, other):
            for k in range(4):
                for r in range(2):
                    o = f"s{sOnes}" if other else v(src[r] + k)
                    c = "0" if k == 0 else v(dst[r])
                    a(f"v_dot2_f32_bf16 {v(dst[r])}, {v(src[r]+k)}, {o}, {c}")

        def unpack_rows(src):
            out = []
            for r in range(2):
                for k in range(4):
                    out.append(f"v_lshlrev_b32 {v(F[r]+2*k)}, 16, {v(src[r]+k)}")
                    out.append(f"v_and_b32 {v(F[r]+2*k+1)}, s{sMask}, {v(src[r]+k)}")
            return out

        def rinv_from_var():
            self.round_pair(RI, U)
            a(f"v_pk_add_f32 {v(RI,2)}, {v(RI,2)}, {v(K,2)} {HI}")
            self.round_pair(RI, U)
            a(f"v_sqrt_f32 {v(RI)}, {v(RI)}")
            a(f"v_sqrt_f32 {v(RI+1)}, {v(RI+1)}")
            self.round_pair(RI, U)
            a(f"v_rcp_f32 {v(RI)}, {v(RI)}")
            a(f"v_rcp_f32 {v(RI+1)}, {v(RI+1)}")

        def center():
            for r in range(2):
                for k in range(4):
                    a(f"v_pk_add_f32 {v(F[r]+2*k,2)}, {v(F[r]+2*k,2)}, {v(M,2)} {sel[r]} {NEG1}")

        def round_rows(tmp):
            out = []
            for r in range(2):
                for k in range(4):
                    out.append(f"v_cvt_pk_bf16_f32 {v(tmp[r]+k)}, {v(F[r]+2*k)}, {v(F[r]+2*k+1)}")
            return out + unpack_rows(tmp)

        def scale_pack(dst):
            for r in range(2):
                for k in range(4):
                    a(f"v_pk_mul_f32 {v(F[r]+2*k,2)}, {v(F[r]+2*k,2)}, {v(RI,2)} {sel[r]}")
                for k in range(4):
                    a(f"v_cvt_pk_bf16_f32 {v(dst[r]+k)}, {v(F[r]+2*k)}, {v(F[r]+2*k+1)}")

        dots(S[:2], X, True)
        un = unpack_rows(X)
        for u in un[:3]:
            a(u)
        self.reduce_wave(S[:2], sT, un[3:])
        a(f"v_pk_mul_f32 {v(D,2)}, s[{sT}:{sT+1}], {v(K,2)} {LO}")
        a(f"v_cvt_pk_bf16_f32 {v(U)}, {v(D)}, {v(D+1)}")
        self.unpack(M, M + 1, U)
        center()
        a(f"v_pk_add_f32 {v(D,2)}, {v(D,2)}, {v(M,2)} {NEG1}")
        for k in range(4):
            for r in range(2):
                q = v(t + 2*r, 2)
                f = v(F[r] + 2*k, 2)
                a(f"v_pk_mul_f32 {q}, {f}, {f}" if k == 0 else f"v_pk_fma_f32 {q}, {f}, {f}, {q}")
        for r in range(2):
            a(f"v_add_f32 {v(S[r])}, {v(t+2*r)}, {v(t+2*r+1)}")
        rr = round_rows(X)
        a(rr[0])
        self.reduce_wave(S[:2], sT, rr[1:])
        a(f"v_pk_mul_f32 {v(RI,2)}, s[{sT}:{sT+1}], {v(K,2)} {LO}")
        a(f"v_pk_fma_f32 {v(RI,2)}, {v(D,2)}, {v(D,2)}, {v(RI,2)} neg_lo:[1,0,0] neg_hi:[1,0,0]")
        rinv_from_var()
        scale_pack(XN)
        dots(S[:2], XN, True)
        dots(S[2:], XN, False)
        un = unpack_rows(XN)
        for u in un[:3]:
            a(u)
        self.reduce_wave(S, sT, un[3:])
        a(f"v_pk_mul_f32 {v(D,2)}, s[{sT}:{sT+1}], {v(K,2)} {LO}")
        a(f"v_pk_mul_f32 {v(RI,2)}, s[{sT+2}:{sT+3}], {v(K,2)} {LO}")
        a(f"v_cvt_pk_bf16_f32 {v(U)}, {v(D)}, {v(D+1)}")
        a(f"v_pk_fma_f32 {v(RI,2)}, {v(D,2)}, {v(D,2)}, {v(RI,2)} neg_lo:[1,0,0] neg_hi:[1,0,0]")
        self.unpack(M, M + 1, U)
        rinv_from_var()
        center()
        for u in round_rows(X):
            a(u)
        scale_pack(X)
        for r in range(2):
            a.ds(f"ds_write_b128 {v(vHw)}, {v(X[r],4)} offset:{L_HROWS + r*HPITCH}", "hw")
        for u in unpack_rows(XN):
            a(u)
        for r in range(2):
            for k in range(4):
                a(f"v_cvt_pk_f16_f32 {v(XH[r]+k)}, {v(F[r]+2*k)}, {v(F[r]+2*k+1)}")
        a.wait(lg="all")
        a("s_barrier")
        for b in range(2):
            for jj in range(2):
                a.ds(f"ds_read_b64_tr_b16 {v(X[b]+2*jj,2)}, {v(vHr)} offset:{L_HROWS + jj*4*HPITCH + b*128}", ("hr", b))
        for r in range(2):
            a.ds(f"ds_write_b128 {v(vXw)}, {v(XH[r],4)} offset:{r*1024}", "xw")
        for b in range(2):
            a.wait(lg=("hr", b))
            a.vmem(f"buffer_store_dwordx4 {v(X[b],4)}, {v(vL16)}, {srd(SRD_WS)}, s{sT+6+b} offen sc1", "hst")
        self.stamp(3)
        AX = (24, 28)
        Y = ((136, 140, 144, 148), (152, 156, 160, 164))
        B2 = ((176, 180), (184, 188))
        C2 = ((192, 196), (200, 204))
        C3 = (208, 212)
        for r in range(2):
            for jj in range(2):
                a.ds(f"ds_read_b64_tr_b16 {v(AX[r]+2*jj,2)}, {v(vXr)} offset:{r*1024 + jj*512}", ("xr", r))
        slots = list(range(p["nA"], p["nB"]))
        for r in range(2):
            a.wait(lg=("xr", r))
            for hf in range(2):
                a(f"v_mfma_f32_16x16x32_f16 {v(Y[r][2*hf],4)}, {v(AX[r],4)}, {v(B1c[hf],4)}, 0")
                a(f"v_mfma_f32_16x16x32_f16 {v(Y[r][2*hf+1],4)}, {v(AX[r],4)}, {v(B1s[hf],4)}, 0")
        for i in slots:
            self.dma_slot(i, ("w", i))
        for r in range(2):
            for hf in range(2):
                yr, yi = Y[r][2*hf], Y[r][2*hf+1]
                for k in (0, 2):
                    a(f"v_pk_mul_f32 {v(t+k,2)}, {v(yr+k,2)}, {v(TWc[hf]+k,2)}")
                    a(f"v_pk_mul_f32 {v(t+4+k,2)}, {v(yi+k,2)}, {v(TWc[hf]+k,2)}")
                for k in (0, 2):
                    a(f"v_pk_fma_f32 {v(t+k,2)}, {v(yi+k,2)}, {v(TWs[hf]+k,2)}, {v(t+k,2)}")
                    a(f"v_pk_fma_f32 {v(t+4+k,2)}, {v(yr+k,2)}, {v(TWs[hf]+k,2)}, {v(t+4+k,2)} neg_lo:[1,0,0] neg_hi:[1,0,0]")
                for k in range(4):
                    a(f"v_cvt_pk_f16_f32 {v(B2[r][hf]+k)}, {v(t+2*k)}, {v(t+2*k+1)}")
        for r in range(2):
            a(f"v_mfma_f32_16x16x32_f16 {v(C3[r],4)}, {v(A3,4)}, {v(B2[r][0],4)}, 0")
            for hf in range(2):
                a(f"v_mfma_f32_16x16x32_f16 {v(C2[r][hf],4)}, {v(A2,4)}, {v(B2[r][hf],4)}, 0")
        a.wait(vm="hst")
        self.flag_store(vHf, 4)
        self.stamp(4)
        for r in range(2):
            a(f"v_cndmask_b32 {v(C2[r][0])}, {v(C2[r][0])}, {v(C3[r])}, s[{sL32}:{sL32+1}]")
        for hf in range(2):
            for i in range(4):
                a(f"v_cvt_pk_f16_f32 {v(t+4*hf+i)}, {v(C2[0][hf]+i)}, {v(C2[1][hf]+i)}")
                a.ds(f"ds_write_b32 {v(vZw)}, {v(t+4*hf+i)} offset:{128*hf + 256*i}", "zw")
        a.wait(lg="all")
        a("s_barrier")
        for b in range(2):
            for q in range(2):
                a.ds(f"ds_read2st64_b32 {v(X[b]+2*q,2)}, {v(vZr)} offset0:{b+16*q} offset1:{b+16*q+8}", ("zr", b))
        for b in range(2):
            a.wait(lg=("zr", b))
            a.vmem(f"buffer_store_dwordx4 {v(X[b],4)}, {v(vL16)}, {srd(SRD_WS)}, s{sT+8} offen offset:{1024*b} sc1", "zst")
        rest = list(range(p["nB"], 14))
        for i in rest[:3]:
            self.dma_slot(i, ("w", i))
        a.wait(vm="zst")
        self.flag_store(vZf, 2)
        a("s_barrier")
        for i in rest[3:]:
            self.dma_slot(i, ("w", i))
        self.stamp(5)

    def main_loop(self, n, first_late, jstride, w_is_a, tail):
        a, p = self.a, self.p
        R = p["R"]
        for i in range(n):
            a.wait(vm=("act", i), lg=(("tr", i) if i >= first_late else None))
            ring = vRing + 8 * (i % R)
            for j in range(4):
                jm, jn = j >> 1, j & 1
                A = ag(8*i + 4*jm, 4) if w_is_a else v(ring + 4*jm, 4)
                B = v(ring + 4*jn, 4) if w_is_a else ag(8*i + 4*jn, 4)
                acc = v(vAcc + 16*j, 16)
                a(f"v_mfma_f32_32x32x16_bf16 {acc}, {A}, {B}, {'0' if i == 0 else acc}")
                if j == 0 and first_late + i < n:
                    self.tr_slot(i, 8 * (first_late + i), jstride, ("tr", first_late + i))
            if i + R < n:
                self.act_load(i + R, ("act", i + R))
            tail(i)

    def reduce_scatter(self, mid=None):
        a = self.a
        T = vTmp
        a(f"s_lshl_b32 s{sT}, s3, 13")
        a(f"v_add_u32 {v(vT0)}, s{sT}, {v(vL16)}")
        a(f"v_add_u32 {v(vT1)}, s{sLw}, {v(vL16)}")
        for j in (1, 2, 3):
            for q in range(4):
                addr, off = (vT0, (j-1)*4096) if j < 3 else (vT1, L_TAIL)
                a.ds(f"ds_write_b128 {v(addr)}, {v(vAcc+16*j+4*q,4)} offset:{off + q*1024}", "rw")
        a(f"v_xor_b32 {v(vT2)}, {1 << 13}, {v(vT0)}")
        a(f"v_xor_b32 {v(vT3)}, {2 << 13}, {v(vT0)}")
        a(f"s_xor_b32 s{sT}, s3, 3")
        a(f"s_lshl_b32 s{sT}, s{sT}, 15")
        a(f"s_add_u32 s{sT}, s{sT}, {L_RING}")
        a(f"v_add_u32 {v(vT1)}, s{sT}, {v(vL16)}")
        if mid:
            mid()
        a.wait(lg="all")
        a("s_barrier")
        for q in range(4):
            for j, addr, off in ((1, vT2, 0), (2, vT3, 4096), (3, vT1, L_TAIL)):
                a.ds(f"ds_read_b128 {v(vAcc+16*j+4*q,4)}, {v(addr)} offset:{off + q*1024}", ("rr", q))
        for q in range(4):
            a.wait(lg=("rr", q))
            for k in (0, 2):
                r = 4*q + k
                a(f"v_pk_add_f32 {v(vAcc+r,2)}, {v(vAcc+r,2)}, {v(vAcc+16+r,2)}")
                a(f"v_pk_add_f32 {v(vAcc+32+r,2)}, {v(vAcc+32+r,2)}, {v(vAcc+48+r,2)}")
            for k in (0, 2):
                r = 4*q + k
                a(f"v_pk_add_f32 {v(vAcc+r,2)}, {v(vAcc+r,2)}, {v(vAcc+32+r,2)}")

    def gemm1(self):
        a, p = self.a, self.p
        FS, R = p["FS"], p["R"]
        vB, vBf, vGf = vTmp, vTmp + 8, vTmp + 24
        for i in (14, 15):
            self.dma_slot(i, ("w", i))
        a(f"v_lshrrev_b32 {v(vT0)}, 5, {v(vLane)}")
        a(f"v_lshlrev_b32 {v(vT1)}, 3, {v(vT0)}")
        a(f"s_lshl_b32 s{sT}, s{sFt}, 7")
        a(f"s_lshl_b32 s{sT+1}, s{sWm}, 6")
        a(f"s_add_u32 s{sT}, s{sT}, s{sT+1}")
        for j in range(4):
            a.vmem(f"buffer_load_dwordx2 {v(vB+2*j,2)}, {v(vT1)}, {srd(SRD_B1)}, s{sT} offen offset:{16*j}", "b1")
        a(f"v_and_b32 {v(vT1)}, 31, {v(vLane)}")
        a(f"v_lshlrev_b32 {v(vT1)}, 4, {v(vT1)}")
        a(f"v_lshl_add_u32 {v(vT1)}, {v(vT0)}, 10, {v(vT1)}")
        a(f"s_lshl_b32 s{sT}, s{sWn}, 9")
        a(f"v_add_u32 {v(vA0)}, s{sT}, {v(vT1)}")
        a(f"v_xor_b32 {v(vA1)}, 0x200, {v(vA0)}")
        a(f"s_lshl_b32 s{sAbase}, s{sDt1}, 18")
        a(f"s_lshl_b32 s{sT}, s3, 16")
        a(f"s_add_u32 s{sAbase}, s{sAbase}, s{sT}")
        a(f"s_add_u32 s{sAend}, s{sAbase}, 65536")
        a(f"s_lshl_b32 s{sT}, s{sRot1}, 11")
        a(f"s_add_u32 s{sAoff}, s{sAbase}, s{sT}")
        a(f"s_lshr_b32 s{sT}, s{sX}, 1")
        a(f"s_lshl_b32 s{sT}, s{sT}, 10")
        a(f"s_lshr_b32 s{sT+1}, s{sDt1}, 1")
        a(f"s_lshl_b32 s{sT+1}, s{sT+1}, 8")
        a(f"s_add_u32 s{sT}, s{sT}, s{sT+1}")
        a(f"s_lshl_b32 s{sT+1}, s3, 6")
        a(f"s_add_u32 s{sT}, s{sT}, s{sT+1}")
        a(f"s_mul_i32 s{sT}, s{sT}, {FS}")
        a(f"s_add_u32 s{sT}, s{sT}, {WS_HF}")
        a(f"v_mul_u32_u24 {v(vPa)}, {FS}, {v(vLane)}")
        a(f"v_add_u32 {v(vPa)}, s{sT}, {v(vPa)}")
        a(f"s_mul_i32 s{sT}, s{sDt1}, 112")
        a(f"s_lshl2_add_u32 s{sT}, s{sFt}, s{sT}")
        a(f"s_add_u32 s{sT}, s{sT}, s3")
        a(f"s_mul_i32 s{sT}, s{sT}, {FS}")
        a(f"s_add_u32 s{sT}, s{sT}, {WS_GF}")
        a(f"v_mul_u32_u24 {v(vGf)}, {1024*FS}, {v(vLane)}")
        a(f"v_add_u32 {v(vGf)}, s{sT}, {v(vGf)}")
        for i in range(17):
            if i < 16:
                a.wait(vm=("w", i))
                self.tr_slot(i, 8 * i, 512, ("tr", i))
            if i >= 1:
                a.wait(lg=("tr", i - 1))
                self.dma_slot(i - 1, ("w", 15 + i))
            if i == 16 - p["pollgap"]:
                self.poll_issue("poll")
        self.stamp(6)
        self.poll_check("poll")
        self.stamp(7)
        for i in range(R):
            self.act_load(i, ("act", i))
        for j in range(8):
            self.unpack(vBf + 2*j, vBf + 2*j + 1, vB + j)

        def tail(i):
            if i == 32 - R - 1:
                self.w2_stream()
                a(f"s_mov_b32 s{sT+6}, 4096")
                a(f"s_mov_b32 s{sT+7}, 512")
                self.w_addresses(f"s{sT+6}", f"s{sT+7}", f"s{sWn}")
            k = i - (32 - R)
            if 0 <= k < p["w2pre"]:
                self.dma_slot(k, ("w2", k), SRD_W2)
        self.main_loop(32, 16, 512, True, tail)
        for k in range(R, p["w2pre"]):
            self.dma_slot(k, ("w2", k), SRD_W2)
        self.stamp(8)
        self.reduce_scatter()
        a("s_barrier")
        c0 = -2 * 1.4426950408889634 * 0.7978845608028654
        a(f"s_mov_b32 s{sK0}, {hexf(c0*0.044715)}")
        a(f"v_mov_b32 {v(vT0)}, {hexf(c0)}")
        a(f"s_mul_i32 s{sT}, s{sDt1}, {112*2048}")
        a(f"s_lshl_b32 s{sT+1}, s{sFt}, 13")
        a(f"s_add_u32 s{sT}, s{sT}, s{sT+1}")
        a(f"s_lshl_b32 s{sT+1}, s{sWm}, 12")
        a(f"s_add_u32 s{sT}, s{sT}, s{sT+1}")
        a(f"s_lshl_b32 s{sT+1}, s{sWn}, 10")
        a(f"s_add_u32 s{sT}, s{sT}, s{sT+1}")
        a(f"s_add_u32 s{sT}, s{sT}, {WS_G}")
        E, P = vAcc + 16, vAcc + 32
        for q in range(2):
            prs = [vAcc + 8*q + 2*k for k in range(4)]
            if p["mimic"]:
                for k, r in enumerate(prs):
                    a(f"v_cvt_pk_bf16_f32 {v(P+k)}, {v(r)}, {v(r+1)}")
                for k, r in enumerate(prs):
                    self.unpack(r, r + 1, P + k)
            for r in prs:
                a(f"v_pk_add_f32 {v(r,2)}, {v(r,2)}, {v(vBf+r-vAcc,2)}")
            if p["mimic"]:
                for k, r in enumerate(prs):
                    a(f"v_cvt_pk_bf16_f32 {v(P+k)}, {v(r)}, {v(r+1)}")
                for k, r in enumerate(prs):
                    self.unpack(r, r + 1, P + k)
            for k, r in enumerate(prs):
                a(f"v_pk_mul_f32 {v(E+2*k,2)}, {v(r,2)}, {v(r,2)}")
            for k, r in enumerate(prs):
                a(f"v_pk_fma_f32 {v(E+2*k,2)}, {v(E+2*k,2)}, s[{sK0}:{sK0+1}], {v(vT0-1,2)} op_sel:[0,0,1] op_sel_hi:[1,0,1]")
            for k, r in enumerate(prs):
                a(f"v_pk_mul_f32 {v(E+2*k,2)}, {v(E+2*k,2)}, {v(r,2)}")
            for k in range(8):
                a(f"v_exp_f32 {v(E+k)}, {v(E+k)}")
            for k in range(4):
                a(f"v_pk_add_f32 {v(E+2*k,2)}, {v(E+2*k,2)}, 1.0 op_sel_hi:[1,0]")
            for k in range(8):
                a(f"v_rcp_f32 {v(E+k)}, {v(E+k)}")
            for k, r in enumerate(prs):
                a(f"v_pk_mul_f32 {v(E+2*k,2)}, {v(E+2*k,2)}, {v(r,2)}")
            for k in range(4):
                a(f"v_cvt_pk_bf16_f32 {v(P+4+4*q+k)}, {v(E+2*k)}, {v(E+2*k+1)}")
            a.vmem(f"buffer_store_dwordx4 {v(P+4+4*q,4)}, {v(vL16)}, {srd(SRD_WS)}, s{sT} offen offset:{2048*q} sc1", "gst")
        self.stamp(9)
        nxt = p["w2pre"]
        for k in range(nxt, min(14, nxt + p["w2mid"])):
            self.dma_slot(k, ("w2", k), SRD_W2)
            nxt = k + 1
        moved = 0
        for k in range(min(4, p["w2pre"])):
            a.wait(vm=("w2", k))
            self.tr_slot(k, 8 * k, 1024, ("tr", k))
            moved = k + 1
        a.wait(vm="gst")
        self.flag_store(vGf, 4)
        self.stamp(10)
        for k in range(nxt, 14):
            self.dma_slot(k, ("w2", k), SRD_W2)
        for i in range(15):
            if moved <= i < 14:
                a.wait(vm=("w2", i))
                self.tr_slot(i, 8 * i, 1024, ("tr", i))
            if i >= 1:
                a.wait(lg=("tr", i - 1))
                self.dma_slot(i - 1, ("w2", 13 + i), SRD_W2)

    def fft(self):
        a, p = self.a, self.p
        FS = p["FS"]
        C32, S32, N32, TWc, TWs, K2c, K2s = 16, 24, 32, 40, 56, 72, 88
        ZU, Y, R0 = 104, 136, 200
        t = 232
        vZre, vZim, vD0, vD1, vPw, vPr, vSf, vNy = 240, 241, 242, 243, 244, 245, 246, 247
        for i in range(14):
            a.wait(vm=("w", i))
            self.tr_slot(i, 8 * i, 1024, ("tr", i))
        a(f"s_and_b32 s{sT}, s{sX}, 1")
        a(f"s_lshl_b32 s{sT}, s{sT}, 10")
        a(f"s_lshr_b32 s{sT+1}, s{sC}, 3")
        a(f"s_lshl_b32 s{sT+1}, s{sT+1}, 8")
        a(f"s_add_u32 s{sT}, s{sT}, s{sT+1}")
        a(f"s_lshl_b32 s{sT+1}, s3, 6")
        a(f"s_add_u32 s{sT}, s{sT}, s{sT+1}")
        a(f"s_mul_i32 s{sT}, s{sT}, {FS}")
        a(f"s_add_u32 s{sT}, s{sT}, {WS_ZF}")
        a(f"v_mul_u32_u24 {v(vPa)}, {FS}, {v(vLane)}")
        a(f"v_add_u32 {v(vPa)}, s{sT}, {v(vPa)}")
        a(f"v_lshrrev_b32 {v(vT0)}, 5, {v(vLane)}")
        a(f"v_xor_b32 {v(vT1)}, {v(vT0)}, {v(vLane)}")
        a(f"v_and_b32 {v(vT1)}, 3, {v(vT1)}")
        a(f"v_lshrrev_b32 {v(vT2)}, 2, {v(vLane)}")
        a(f"v_lshlrev_b32 {v(vT2)}, 13, {v(vT2)}")
        a(f"v_lshl_add_u32 {v(vD0)}, {v(vT1)}, 4, {v(vT2)}")
        a(f"v_xor_b32 {v(vD1)}, 32, {v(vD0)}")
        a(f"v_bfe_u32 {v(vT1)}, {v(vLane)}, 2, 2")
        a(f"v_mul_u32_u24 {v(vZre)}, {512+16}, {v(vT1)}")
        a(f"v_lshl_add_u32 {v(vZre)}, {v(vT0)}, 12, {v(vZre)}")
        a(f"v_bfe_u32 {v(vT1)}, {v(vLane)}, 4, 1")
        a(f"v_lshl_add_u32 {v(vZre)}, {v(vT1)}, 7, {v(vZre)}")
        a(f"v_bfe_u32 {v(vT1)}, {v(vLane)}, 1, 1")
        a(f"v_lshl_add_u32 {v(vZre)}, {v(vT1)}, 6, {v(vZre)}")
        a(f"v_and_b32 {v(vT1)}, 1, {v(vLane)}")
        a(f"v_lshl_add_u32 {v(vZre)}, {v(vT1)}, 3, {v(vZre)}")
        a(f"v_add_u32 {v(vZre)}, s{sLw}, {v(vZre)}")
        a(f"v_and_b32 {v(vT1)}, 31, {v(vLane)}")
        a(f"v_lshlrev_b32 {v(vPw)}, 2, {v(vT1)}")
        a(f"v_lshl_add_u32 {v(vPw)}, {v(vT0)}, 10, {v(vPw)}")
        a(f"v_lshlrev_b32 {v(vNy)}, 2, {v(vPw)}")
        a(f"s_lshl_b32 s{sT}, s3, 13")
        a(f"v_add_u32 {v(vPw)}, s{sT}, {v(vPw)}")
        a(f"s_lshl_b32 s{sT}, s3, 11")
        a(f"v_lshl_add_u32 {v(vPr)}, {v(vLane)}, 2, s{sT}")
        a(f"s_lshl2_add_u32 s{sT}, s{sC}, s3")
        a(f"s_mul_i32 s{sT}, s{sT}, {FS}")
        a(f"s_add_u32 s{sT}, s{sT}, {WS_SF}")
        a(f"v_mul_u32_u24 {v(vSf)}, {128*FS}, {v(vLane)}")
        a(f"v_add_u32 {v(vSf)}, s{sT}, {v(vSf)}")
        a(f"v_cvt_f32_u32 {v(vT1)}, {v(vT1)}")
        a(f"v_cvt_f32_u32 {v(vT0)}, {v(vT0)}")
        a(f"v_mul_f32 {v(vT2)}, {hexf(1/32)}, {v(vT1)}")
        a(f"v_mul_f32 {v(vT3)}, {v(vT2)}, {v(vT0)}")
        a(f"v_mul_f32 {v(vT3)}, {hexf(8.0)}, {v(vT3)}")
        self.packed_table(vT2, vT3, [16*ks + i for ks in range(2) for i in range(8)], C32, S32, t)
        for k in range(8):
            a(f"v_xor_b32 {v(N32+k)}, 0x80008000, {v(S32+k)}")
        self.poll_issue("poll")
        a(f"v_mul_f32 {v(vT2)}, {hexf(1/2048)}, {v(vT1)}")
        a(f"v_mul_f32 {v(vT3)}, {v(vT2)}, {v(vT0)}")
        a(f"v_mul_f32 {v(vT3)}, 4.0, {v(vT3)}")
        self.packed_table(vT2, vT3, [32*mt + 8*j + i for mt in range(2) for j in range(4) for i in range(4)], TWc, TWs, t)
        self.stamp(6)
        self.poll_check("poll")
        a.wait(lg="all")
        a("s_barrier")
        self.stamp(7)
        a(f"s_lshl_b32 s{sT}, s{sC}, 8")
        a(f"s_lshl_b32 s{sT+1}, s3, 6")
        a(f"s_add_u32 s{sT}, s{sT}, s{sT+1}")
        a(f"s_add_u32 s{sT}, s{sT}, {WS_Z}")
        a(f"s_mov_b32 m0, s{sLw}")
        for i in range(16):
            a.vmem(f"buffer_load_dwordx4 {v(vD1 if i & 1 else vD0)}, {srd(SRD_WS)}, s{sT} offen sc1 lds", "zi")
            if i < 15:
                a(f"s_add_u32 m0, m0, s{s1024}")
                a(f"s_add_u32 s{sT}, s{sT}, {16*8192}")
        a(f"s_or_b32 s{sT}, s{sC}, s3")
        a(f"s_cmp_eq_u32 s{sT}, 0")
        a(f"s_cselect_b32 s{sSpecial}, 1, 0")
        nn = self.lab("no_nonce")
        a(f"s_cbranch_scc0 {nn}")
        a(f"v_mov_b32 {v(vT4)}, {WS_NONCE}")
        a("s_mov_b64 exec, 1")
        a(f"buffer_store_dword {v(vFlagV)}, {v(vT4)}, {srd(SRD_WS)}, 0 offen sc1")
        a("s_mov_b64 exec, -1")
        a.label(nn)
        for u in range(2):
            a(f"v_fma_f32 {v(vT2)}, {v(vT1)}, 2.0, {'1.0' if u else '0'}")
            a(f"v_mul_f32 {v(vT2)}, {hexf(1/64)}, {v(vT2)}")
            a(f"v_mul_f32 {v(vT3)}, {v(vT2)}, {v(vT0)}")
            a(f"v_mul_f32 {v(vT3)}, 4.0, {v(vT3)}")
            self.packed_table(vT2, vT3, [16*q + 8*(i >> 2) + (i & 3) for q in range(2) for i in range(8)], K2c + 8*u, K2s + 8*u, t)
        a(f"s_sub_u32 s{sPass}, 1, s{sSpecial}")
        a(f"s_lshl_b32 s{sT}, s{sSpecial}, 4")
        a(f"v_xor_b32 {v(vZre)}, s{sT}, {v(vZre)}")
        a.wait(vm="all")
        self.stamp(8)
        top, nz, p0, p1, nxt = (self.lab(s) for s in ("pass", "keep_im", "nyq", "first", "next"))
        a.label(top)
        a(f"v_xor_b32 {v(vZim)}, 16, {v(vZre)}")
        for mt in range(2):
            for ri, addr in ((0, vZre), (1, vZim)):
                for ks in range(2):
                    for jj in range(2):
                        a.ds(f"ds_read_b64_tr_b16 {v(ZU+16*mt+8*ri+4*ks+2*jj,2)}, {v(addr)} offset:{ks*8192+jj*2048+mt*256}", ("z", mt))
            if mt == 0:
                a(f"s_cmp_lt_u32 s{sPass}, 2")
                a(f"s_cselect_b32 s{sT}, s{sSpecial}, 0")
                a(f"s_cmp_eq_u32 s{sT}, 0")
        a(f"s_cbranch_scc1 {nz}")
        a("s_waitcnt lgkmcnt(0)")
        for mt in range(2):
            for k in range(8):
                a(f"v_mov_b32 {v(ZU+16*mt+8+k)}, 0")
        a.label(nz)
        for mt in range(2):
            a.wait(lg=("z", mt))
            yr, yi = v(Y + 32*mt, 16), v(Y + 32*mt + 16, 16)
            for ks in range(2):
                zr, zi = v(ZU + 16*mt + 4*ks, 4), v(ZU + 16*mt + 8 + 4*ks, 4)
                a(f"v_mfma_f32_32x32x16_f16 {yr}, {zr}, {v(C32+4*ks,4)}, {'0' if ks == 0 else yr}")
                a(f"v_mfma_f32_32x32x16_f16 {yi}, {zi}, {v(C32+4*ks,4)}, {'0' if ks == 0 else yi}")
                a(f"v_mfma_f32_32x32x16_f16 {yr}, {zi}, {v(S32+4*ks,4)}, {yr}")
                a(f"v_mfma_f32_32x32x16_f16 {yi}, {zr}, {v(N32+4*ks,4)}, {yi}")
        for mt in range(2):
            yr, yi = Y + 32*mt, Y + 32*mt + 16
            for k in range(8):
                a(f"v_cvt_pk_f16_f32 {v(yr+k)}, {v(yr+2*k)}, {v(yr+2*k+1)}")
            for k in range(8):
                a(f"v_cvt_pk_f16_f32 {v(yi+k)}, {v(yi+2*k)}, {v(yi+2*k+1)}")
            for k in range(8):
                a(f"v_pk_mul_f16 {v(yr+8+k)}, {v(yr+k)}, {v(TWc+8*mt+k)}")
                a(f"v_pk_mul_f16 {v(yi+8+k)}, {v(yi+k)}, {v(TWc+8*mt+k)}")
            for k in range(8):
                a(f"v_pk_fma_f16 {v(yr+8+k)}, {v(yi+k)}, {v(TWs+8*mt+k)}, {v(yr+8+k)}")
                a(f"v_pk_fma_f16 {v(yi+8+k)}, {v(yr+k)}, {v(TWs+8*mt+k)}, {v(yi+8+k)} neg_lo:[1,0,0] neg_hi:[1,0,0]")
        for u in range(2):
            for ri in range(2):
                for k in range(8):
                    a(f"v_pk_add_f16 {v(ZU+16*u+8*ri+k)}, {v(Y+16*ri+8+k)}, {v(Y+32+16*ri+8+k)} {NEG1 if u else ''}")
        for ri in range(2):
            for q in range(2):
                for u in range(2):
                    acc = v(Y + 16*u, 16)
                    kc = (K2s if ri else K2c) + 8*u + 4*q
                    a(f"v_mfma_f32_32x32x16_f16 {acc}, {v(kc,4)}, {v(ZU+16*u+8*ri+4*q,4)}, {'0' if ri + q == 0 else acc}")
        a(f"s_cmp_eq_u32 s{sPass}, 1")
        a(f"s_cbranch_scc1 {p1}")
        a(f"s_cmp_eq_u32 s{sPass}, 0")
        a(f"s_cbranch_scc1 {p0}")
        for u in range(2):
            for k in range(16):
                a(f"v_cvt_pk_bf16_f32 {v(R0+16*u+k)}, {v(R0+16*u+k)}, {v(Y+16*u+k)}")
                a.ds(f"ds_write_b32 {v(vPw)}, {v(R0+16*u+k)} offset:{128*u + 256*(8*(k >> 2) + (k & 3))}", "pw")
        a(f"s_branch {nxt}")
        a.label(p0)
        for u in range(2):
            for k in range(16):
                a(f"v_cvt_pk_bf16_f32 {v(R0+16*u+k)}, {v(Y+16*u+k)}, {v(Y+16*u+k)}")
                a(f"s_mov_b32 s{sT}, {WS_S + 32*32768 + 4*(128*u + 256*(8*(k >> 2) + (k & 3)))}")
                a(f"buffer_store_dword {v(R0+16*u+k)}, {v(vNy)}, {srd(SRD_WS)}, s{sT} offen sc1")
        a(f"v_xor_b32 {v(vZre)}, 16, {v(vZre)}")
        a(f"s_mov_b32 s{sPass}, 1")
        a("s_nop 1")
        a(f"s_branch {top}")
        a.label(p1)
        for k in range(0, 32, 2):
            a(f"v_mov_b64 {v(R0+k,2)}, {v(Y+k,2)}")
        a(f"v_xor_b32 {v(vZre)}, 32, {v(vZre)}")
        a(f"s_mov_b32 s{sPass}, 2")
        a("s_nop 7")
        a(f"s_branch {top}")
        a.label(nxt)
        self.stamp(9)
        for k in range(6):
            self.dma_slot(k, ("w2", 14 + k), SRD_W2)
        a.wait(lg="all")
        a("s_barrier")
        a(f"s_lshl_b32 s{sT}, s{sC}, 15")
        a(f"s_lshl_b32 s{sT+1}, s3, 13")
        a(f"s_add_u32 s{sT}, s{sT}, s{sT+1}")
        a(f"s_add_u32 s{sT}, s{sT}, {WS_S}")
        a(f"s_add_u32 s{sT+1}, s{sT}, 4096")
        for half in range(2):
            for b in range(4*half, 4*half + 4):
                for q in range(2):
                    a.ds(f"ds_read2st64_b32 {v(Y+4*b+2*q,2)}, {v(vPr)} offset0:{b+64*q} offset1:{b+64*q+32}", ("pr", b))
            for b in range(4*half, 4*half + 4):
                a.wait(lg=("pr", b))
                a.vmem(f"buffer_store_dwordx4 {v(Y+4*b,4)}, {v(vL16)}, {srd(SRD_WS)}, s{sT+half} offen offset:{1024*(b & 3)} sc1", "sst")
        for k in range(6, 10):
            self.dma_slot(k, ("w2", 14 + k), SRD_W2)
        a.wait(vm="sst")
        self.flag_store(vSf, 8)
        a("s_barrier")
        for k in range(10, 14):
            self.dma_slot(k, ("w2", 14 + k), SRD_W2)
        self.stamp(10)

    def gemm2(self):
        a, p = self.a, self.p
        FS, R = p["FS"], p["R"]
        vXo, vSa, vSe = vTmp, vTmp + 1, vTmp + 2
        XP, SP, SE, B2 = vTmp + 4, vTmp + 12, vTmp + 20, vTmp + 22
        XF, SF = vTmp + 24, vTmp + 40
        a(f"s_lshr_b32 s{sT}, s{sX}, 1")
        a(f"s_lshl_b32 s{sT}, s{sT}, 10")
        a(f"s_mul_i32 s{sT+1}, s{sDt2}, 112")
        a(f"s_add_u32 s{sT}, s{sT}, s{sT+1}")
        a(f"s_mul_i32 s{sT+1}, s3, 28")
        a(f"s_add_u32 s{sT}, s{sT}, s{sT+1}")
        a(f"s_mul_i32 s{sT}, s{sT}, {FS}")
        a(f"s_add_u32 s{sT}, s{sT}, {WS_GF}")
        a(f"v_min_u32 {v(vPa)}, 27, {v(vLane)}")
        a(f"v_mul_u32_u24 {v(vPa)}, {FS}, {v(vPa)}")
        a(f"v_add_u32 {v(vPa)}, s{sT}, {v(vPa)}")
        self.poll_issue("poll")
        a(f"s_lshl_b32 s{sT}, s{sWm}, 10")
        a(f"v_add_u32 {v(vA0)}, s{sT}, {v(vL16)}")
        a(f"v_xor_b32 {v(vA1)}, 0x400, {v(vA0)}")
        a(f"s_mul_i32 s{sAbase}, s{sDt2}, {112*2048}")
        a(f"s_mul_i32 s{sT}, s3, {28*2048}")
        a(f"s_add_u32 s{sAbase}, s{sAbase}, s{sT}")
        a(f"s_add_u32 s{sAbase}, s{sAbase}, {WS_G}")
        a(f"s_add_u32 s{sAend}, s{sAbase}, {28*2048}")
        a(f"s_lshl_b32 s{sT}, s{sRot2}, 11")
        a(f"s_add_u32 s{sAoff}, s{sAbase}, s{sT}")
        a(f"v_and_b32 {v(vT0)}, 31, {v(vLane)}")
        a(f"v_lshrrev_b32 {v(vT1)}, 5, {v(vLane)}")
        a(f"s_lshl_b32 s{sT}, s{sTt}, 6")
        a(f"s_lshl_b32 s{sT+1}, s{sWn}, 5")
        a(f"s_add_u32 s{sT}, s{sT}, s{sT+1}")
        a(f"v_add_u32 {v(vT0)}, s{sT}, {v(vT0)}")
        a(f"s_lshl_b32 s{sT}, s{sDt2}, 3")
        a(f"s_lshl2_add_u32 s{sT}, s{sWm}, s{sT}")
        a(f"v_add_u32 {v(vT1)}, s{sT}, {v(vT1)}")
        a(f"v_lshlrev_b32 {v(vXo)}, 10, {v(vT0)}")
        a(f"v_lshl_add_u32 {v(vXo)}, {v(vT1)}, 4, {v(vXo)}")
        a(f"v_lshlrev_b32 {v(vT4)}, 1, {v(vT0)}")
        a(f"s_cmp_ge_u32 s{sDt2}, 4")
        a(f"s_cselect_b32 s{sMir}, 1, 0")
        a(f"s_cselect_b64 vcc, -1, 0")
        a(f"v_sub_u32 {v(vT2)}, 0, {v(vT0)}")
        a(f"v_and_b32 {v(vT2)}, 0x7ff, {v(vT2)}")
        a(f"v_sub_u32 {v(vT3)}, 63, {v(vT1)}")
        a(f"v_cndmask_b32 {v(vT0)}, {v(vT0)}, {v(vT2)}, vcc")
        a(f"v_cndmask_b32 {v(vT1)}, {v(vT1)}, {v(vT3)}, vcc")
        a(f"v_lshlrev_b32 {v(vSa)}, 4, {v(vT0)}")
        a(f"v_lshl_add_u32 {v(vSa)}, {v(vT1)}, 15, {v(vSa)}")
        a(f"v_add_u32 {v(vSe)}, 0x8000, {v(vSa)}")
        a(f"s_cselect_b32 s{sK0+3}, {WS_S - 65536}, s{sK0+3}")
        a(f"s_cselect_b32 s{sK0+3}, s{sK0+3}, {WS_S + 65536}")
        a(f"s_mov_b32 s{sK0+2}, {WS_S}")
        self.stamp(11)
        self.poll_check("poll")
        self.stamp(12)
        for i in range(R):
            self.act_load(i, ("act", i))
        a(f"s_lshl_b32 s{sT}, s{sDt2}, 3")
        a(f"s_sub_u32 s{sT+1}, 56, s{sT}")
        a(f"s_cmp_eq_u32 s{sMir}, 0")
        a(f"s_cselect_b32 s{sT}, s{sT}, s{sT+1}")
        a(f"s_lshl_b32 s{sT}, s{sT}, 2")
        a(f"v_min_u32 {v(vPa)}, 35, {v(vLane)}")
        a(f"v_add_u32 {v(vPa)}, s{sT}, {v(vPa)}")
        a(f"v_and_b32 {v(vPa)}, 127, {v(vPa)}")
        a(f"s_lshl_b32 s{sT}, s{sX}, 7")
        a(f"v_add_u32 {v(vPa)}, s{sT}, {v(vPa)}")
        a(f"v_mul_u32_u24 {v(vPa)}, {FS}, {v(vPa)}")
        a(f"v_add_u32 {v(vPa)}, {WS_SF}, {v(vPa)}")

        def tail(i):
            if i == 28 - R - 2:
                self.poll_issue("spoll")
            if i == 28 - R - 1:
                a.vmem(f"buffer_load_dwordx4 {v(XP,4)}, {v(vXo)}, {srd(SRD_X)}, 0 offen", "xe")
                a.vmem(f"buffer_load_dwordx4 {v(XP+4,4)}, {v(vXo)}, {srd(SRD_X)}, 0 offen offset:32", "xe")
                a.vmem(f"buffer_load_ushort {v(B2)}, {v(vT4)}, {srd(SRD_B2)}, 0 offen", "xe")
            if i == 28 - 3:
                self.poll_check("spoll")
                for k in range(2):
                    a.vmem(f"buffer_load_dwordx4 {v(SP+4*k,4)}, {v(vSa)}, {srd(SRD_WS)}, s{sK0+2+k} offen sc1", "se")
                    a.vmem(f"buffer_load_ushort {v(SE+k)}, {v(vSe)}, {srd(SRD_WS)}, s{sK0+2+k} offen sc1", "se")
        self.main_loop(28, 14, 1024, False, tail)
        self.stamp(13)

        def mid():
            a.wait(vm="xe")
            for k in range(8):
                self.unpack(XF + 2*k, XF + 2*k + 1, XP + k)
            a(f"v_lshlrev_b32 {v(B2)}, 16, {v(B2)}")
            a.wait(vm="se")
            d = self.lab("direct")
            a(f"s_cmp_eq_u32 s{sMir}, 0")
            a(f"s_cbranch_scc1 {d}")
            for k in range(2):
                P = SP + 4*k
                a(f"v_bfi_b32 {v(SE+k)}, s{sMask}, {v(P+3)}, {v(SE+k)}")
                a(f"v_bfi_b32 {v(XP)}, s{sMask}, {v(P+2)}, {v(P+3)}")
                a(f"v_bfi_b32 {v(P+3)}, s{sMask}, {v(P)}, {v(P+1)}")
                a(f"v_bfi_b32 {v(P+2)}, s{sMask}, {v(P+1)}, {v(P+2)}")
                a(f"v_mov_b32 {v(P)}, {v(SE+k)}")
                a(f"v_mov_b32 {v(P+1)}, {v(XP)}")
            a.label(d)
            for k in range(8):
                self.unpack(SF + 2*k, SF + 2*k + 1, SP + k)
        self.reduce_scatter(mid)
        for j in (0, 8):
            for i in range(4):
                a(f"v_permlane32_swap_b32 {v(vAcc+j+i)}, {v(vAcc+j+4+i)}")
        a(f"s_mov_b32 s{sK0}, {hexf(-1.4426950408889634)}")
        E, P = vAcc + 16, vAcc + 32
        mim = p["mimic"]

        def rnd(regs):
            for k, r in enumerate(regs):
                a(f"v_cvt_pk_bf16_f32 {v(P+k)}, {v(r)}, {v(r+1)}")
            for k, r in enumerate(regs):
                self.unpack(r, r + 1, P + k)

        for q in range(2):
            prs = [vAcc + 8*q + 2*k for k in range(4)]
            es = [E + 2*k for k in range(4)]
            if mim:
                rnd(prs)
            for r in prs:
                a(f"v_pk_add_f32 {v(r,2)}, {v(r,2)}, {v(B2,2)} {LO}")
            if mim:
                rnd(prs)
            for r, e in zip(prs, es):
                a(f"v_pk_mul_f32 {v(e,2)}, {v(r,2)}, s[{sK0}:{sK0+1}] op_sel_hi:[1,0]")
            for k in range(8):
                a(f"v_exp_f32 {v(E+k)}, {v(E+k)}")
            for e in es:
                a(f"v_pk_add_f32 {v(e,2)}, {v(e,2)}, 1.0 op_sel_hi:[1,0]")
            for k in range(8):
                a(f"v_rcp_f32 {v(E+k)}, {v(E+k)}")
            for r, e in zip(prs, es):
                a(f"v_pk_mul_f32 {v(e,2)}, {v(e,2)}, {v(r,2)}")
            if mim:
                rnd(es)
                for k, e in enumerate(es):
                    a(f"v_pk_mul_f32 {v(e,2)}, {v(e,2)}, {v(SF+8*q+2*k,2)}")
                rnd(es)
                for k, e in enumerate(es):
                    a(f"v_pk_add_f32 {v(e,2)}, {v(e,2)}, {v(XF+8*q+2*k,2)}")
            else:
                for k, e in enumerate(es):
                    a(f"v_pk_fma_f32 {v(e,2)}, {v(e,2)}, {v(SF+8*q+2*k,2)}, {v(XF+8*q+2*k,2)}")
            for k, e in enumerate(es):
                a(f"v_cvt_pk_bf16_f32 {v(P+4+4*q+k)}, {v(e)}, {v(e+1)}")
            a.vmem(f"buffer_store_dwordx4 {v(P+4+4*q,4)}, {v(vXo)}, {srd(SRD_OUT)}, 0 offen offset:{32*q}", "out")
        self.stamp(14)
        if p["stamps"]:
            a.wait(vm="all")
            self.stamp(15)
            a(f"s_lshl2_add_u32 s{sT}, s2, s3")
            a(f"s_lshl_b32 s{sT}, s{sT}, 6")
            a(f"s_add_u32 s{sT}, s{sT}, {WS_STAMP}")
            a(f"v_mov_b32 {v(vT0)}, 0")
            for k in range(16):
                a(f"v_mov_b32 {v(vAcc+k)}, s{sStamp+k}")
            a("s_mov_b64 exec, 1")
            for k in range(4):
                a(f"buffer_store_dwordx4 {v(vAcc+4*k,4)}, {v(vT0)}, {srd(SRD_WS)}, s{sT} offen offset:{16*k}")

    def build(self):
        a = self.a
        a.label(KERNEL)
        self.prologue()
        self.phase0()
        snap = a.snapshot()
        a(f"s_cmp_ge_u32 s{sIdx}, 28")
        a("s_cbranch_scc1 L_fft")
        self.gemm1()
        a.label("L_join")
        a.vm, a.lg = ["old"], [("tr", 13)]
        a.wait(lg="all")
        self.gemm2()
        a("s_endpgm")
        a.label("L_fft")
        a.restore(snap)
        self.fft()
        a("s_branch L_join")
        a.label("L_end")
        a("s_endpgm")
        body = a.finish()
        head = open("cdna_kernels/" + NAME + ".s.ref").read().split("; Override launch")[0]
        out = [head.rstrip(),
               "; Generated by gen/gen.py: LN + hidden FFT -> GEMM1 | sequence FFT -> GEMM2 + gate, one persistent launch.",
               f"; @launch grid=(256,1,1) block=(256,1,1) lds={LDS_BYTES}",
               '.amdgcn_target "amdgcn-amd-amdhsa--gfx950"', ".text", f".globl {KERNEL}", ".p2align 8",
               f".type {KERNEL},@function"] + body + [
               '.section .rodata,"a"', ".p2align 6", f".amdhsa_kernel {KERNEL}",
               "  .amdhsa_next_free_vgpr 512", "  .amdhsa_next_free_sgpr 102", "  .amdhsa_accum_offset 256",
               "  .amdhsa_group_segment_fixed_size 0", "  .amdhsa_kernarg_size 104", "  .amdhsa_user_sgpr_count 2",
               "  .amdhsa_user_sgpr_kernarg_segment_ptr 1", "  .amdhsa_system_sgpr_workgroup_id_x 1",
               "  .amdhsa_float_denorm_mode_32 3", ".end_amdhsa_kernel", ""]
        return "\n".join(out)


def parse(args):
    kw = {}
    for s in args:
        k, val = s.split("=", 1)
        try:
            val = eval(val)
        except Exception:
            pass
        kw[k] = val
    return kw


if __name__ == "__main__":
    path = sys.argv[1]
    open(path, "w").write(Gen(**parse(sys.argv[2:])).build())
```

```python
import struct
import sys
from asmlib import Asm

NAME = "recurrent_scan__spectral_fnet__mixer_token_mlp__prompt"
KERNEL = NAME + "_kernel"

WS_H, WS_Z, WS_G, WS_S = 0x0, 0x200000, 0x400000, 0x600000
WS_NONCE = 0x710000
WS_HF, WS_ZF, WS_GF, WS_SF = 0x800000, 0x880000, 0x8C0000, 0x940000
WS_STAMP = 0x980000
WS_SIZE = 0xA00000

L_HROWS, HPITCH = 0, 1088
L_XROWS = 8704
L_ZPL = 16896
L_RING, L_WAVE = 32768, 32768
L_TAIL = 28672
LDS_BYTES = 163840

SRD_X, SRD_WA, SRD_W2, SRD_WS, SRD_OUT, SRD_B1, SRD_B2 = 4, 8, 12, 16, 20, 24, 28
sFlag, sX, sIdx, sFt, sDt1, sTt, sDt2, sC = 32, 33, 34, 35, 36, 37, 38, 39
sWoff, sWbase, sWend, sWstep = 40, 41, 42, 43
sAoff, sAbase, sAend = 44, 45, 46
sLw, s1024, sMask = 47, 48, 49
sT = 50
sL32 = 60
sSpin, sRot1, sRot2, sPass = 62, 63, 64, 65
sOnes, sWm, sWn, s2048 = 66, 67, 68, 69
sK0 = 70
sSpecial, sMir = 78, 79
sStamp = 80
sClk = 96

vLane, vWd0, vWd1, vTrA, vTrB, vA0, vA1, vL16 = 0, 1, 2, 3, 4, 5, 6, 7
vFlagV, vPoll, vPa, vT0, vT1, vT2, vT3, vT4 = 8, 9, 10, 11, 12, 13, 14, 15
vAcc = 16
vRing = 80
vTmp = 176


def f2i(x):
    return struct.unpack("<I", struct.pack("<f", x))[0]


def hexf(x):
    return "0x%08x" % f2i(x)


def srd(n):
    return f"s[{n}:{n+3}]"


def v(a, n=1):
    return f"v{a}" if n == 1 else f"v[{a}:{a+n-1}]"


def ag(a, n=1):
    return f"a{a}" if n == 1 else f"a[{a}:{a+n-1}]"


LO = "op_sel:[0,0] op_sel_hi:[1,0]"
HI = "op_sel:[0,1] op_sel_hi:[1,1]"
NEG1 = "neg_lo:[0,1] neg_hi:[0,1]"


class Gen:
    def __init__(self, **kw):
        self.p = dict(FS=128, R=8, nA=4, nB=6, stamps=False, xflags="", wflags="", w2pre=8, w2mid=3,
                      sleep=2, prefetch_code=True, mimic=True, pollgap=3, spin=200000, cal=None)
        self.p.update(kw)
        self.a = Asm()
        self.nlab = 0
        self.nstamp = 0

    def lab(self, s):
        self.nlab += 1
        return f"L{self.nlab}_{s}"

    def stamp(self, k):
        if not self.p["stamps"] or self.p["cal"] not in (None, k):
            return
        a = self.a
        a(f"s_memrealtime s[{sClk}:{sClk+1}]")
        a.wait(lg="all")
        a(f"s_mov_b32 s{sStamp+k}, s{sClk}")

    def unpack(self, lo, hi, src):
        self.a(f"v_lshlrev_b32 {v(lo)}, 16, {v(src)}")
        self.a(f"v_and_b32 {v(hi)}, s{sMask}, {v(src)}")

    def round_pair(self, pair, tmp):
        self.a(f"v_cvt_pk_bf16_f32 {v(tmp)}, {v(pair)}, {v(pair+1)}")
        self.unpack(pair, pair + 1, tmp)

    def reduce_wave(self, regs, sdst, fill=()):
        a = self.a
        fill = list(fill)
        for ctl in ("quad_perm:[1,0,3,2] row_mask:0xf", "quad_perm:[2,3,0,1] row_mask:0xf", "row_half_mirror row_mask:0xf",
                    "row_mirror row_mask:0xf", "row_bcast:15 row_mask:0xa", "row_bcast:31 row_mask:0xc"):
            for r in regs:
                a(f"v_add_f32_dpp {v(r)}, {v(r)}, {v(r)} {ctl} bank_mask:0xf")
            if fill and len(regs) < 3:
                a(fill.pop(0))
        for f in fill:
            a(f)
        for k, r in enumerate(regs):
            a(f"v_readlane_b32 s{sdst+k}, {v(r)}, 63")

    def dma_slot(self, lds_slot, tag, srdn=SRD_WA):
        a = self.a
        fl = self.p["wflags"]
        a(f"s_add_u32 m0, s{sLw}, {lds_slot*2048}" if lds_slot else f"s_mov_b32 m0, s{sLw}")
        a.vmem(f"buffer_load_dwordx4 {v(vWd0)}, {srd(srdn)}, s{sWoff} offen {fl} lds", tag)
        a(f"s_add_u32 m0, m0, s{s1024}")
        a.vmem(f"buffer_load_dwordx4 {v(vWd1)}, {srd(srdn)}, s{sWoff} offen {fl} lds", tag)
        a(f"s_add_u32 s{sWoff}, s{sWoff}, s{sWstep}")
        a(f"s_cmp_eq_u32 s{sWoff}, s{sWend}")
        a(f"s_cselect_b32 s{sWoff}, s{sWbase}, s{sWoff}")

    def tr_slot(self, lds_slot, areg, jstride, tag):
        for jm, addr in ((0, vTrA), (1, vTrB)):
            for jj in range(2):
                self.a.ds(f"ds_read_b64_tr_b16 {ag(areg+4*jm+2*jj, 2)}, {v(addr)} offset:{lds_slot*2048+jj*jstride}", tag)

    def act_load(self, i, tag):
        a = self.a
        r = vRing + 8 * (i % self.p["R"])
        a.vmem(f"buffer_load_dwordx4 {v(r,4)}, {v(vA0)}, {srd(SRD_WS)}, s{sAoff} offen sc1", tag)
        a.vmem(f"buffer_load_dwordx4 {v(r+4,4)}, {v(vA1)}, {srd(SRD_WS)}, s{sAoff} offen sc1", tag)
        a(f"s_add_u32 s{sAoff}, s{sAoff}, s{s2048}")
        a(f"s_cmp_eq_u32 s{sAoff}, s{sAend}")
        a(f"s_cselect_b32 s{sAoff}, s{sAbase}, s{sAoff}")

    def flag_store(self, addr, nrep):
        a = self.a
        a(f"s_mov_b64 exec, {(1 << nrep) - 1}")
        a.vmem(f"buffer_store_dword {v(vFlagV)}, {v(addr)}, {srd(SRD_WS)}, 0 offen sc1", "flag")
        a("s_mov_b64 exec, -1")

    def poll_issue(self, tag):
        self.a.vmem(f"buffer_load_dword {v(vPoll)}, {v(vPa)}, {srd(SRD_WS)}, 0 offen sc1", tag)

    def poll_check(self, tag):
        a = self.a
        ok, retry = self.lab("ok"), self.lab("retry")
        a.wait(vm=tag)
        a(f"v_cmp_ne_u32 vcc, s{sFlag}, {v(vPoll)}")
        a(f"s_cbranch_vccz {ok}")
        a.label(retry)
        if self.p["sleep"]:
            a(f"s_sleep {self.p['sleep']}")
        a(f"buffer_load_dword {v(vPoll)}, {v(vPa)}, {srd(SRD_WS)}, 0 offen sc1")
        a(f"s_add_u32 s{sSpin}, s{sSpin}, 1")
        a(f"s_cmp_gt_u32 s{sSpin}, {self.p['spin']}")
        a("s_waitcnt vmcnt(0)")
        a(f"s_cbranch_scc1 {ok}")
        a(f"v_cmp_ne_u32 vcc, s{sFlag}, {v(vPoll)}")
        a(f"s_cbranch_vccnz {retry}")
        a.label(ok)

    def sincos(self, ang, cdst, sdst):
        if cdst is not None:
            self.a(f"v_cos_f32 {v(cdst)}, {v(ang)}")
        if sdst is not None:
            self.a(f"v_sin_f32 {v(sdst)}, {v(ang)}")

    def packed_table(self, step, base, mults, cdst, sdst, t):
        a = self.a
        for k in range(0, len(mults), 2):
            for i in range(2):
                m = mults[k + i]
                if m == 0:
                    a(f"v_mov_b32 {v(t+i)}, {v(base)}")
                else:
                    a(f"v_fmamk_f32 {v(t+i)}, {v(step)}, {hexf(m)}, {v(base)}")
            for i in range(2):
                self.sincos(t + i, t + 2 + i, t + 4 + i)
            a(f"v_cvt_pk_f16_f32 {v(cdst+k//2)}, {v(t+2)}, {v(t+3)}")
            a(f"v_cvt_pk_f16_f32 {v(sdst+k//2)}, {v(t+4)}, {v(t+5)}")

    def w_addresses(self, pitch_s, perm, swap_s):
        a = self.a
        a(f"v_lshrrev_b32 {v(vT0)}, 3, {v(vLane)}")
        a(f"v_mul_lo_u32 {v(vWd0)}, {pitch_s}, {v(vT0)}")
        a(f"v_lshlrev_b32 {v(vT0)}, 1, {v(vT0)}")
        a(f"v_and_b32 {v(vT0)}, 4, {v(vT0)}")
        a(f"v_xor_b32 {v(vT0)}, {v(vT0)}, {v(vLane)}")
        a(f"v_and_b32 {v(vT0)}, 7, {v(vT0)}")
        a(f"v_lshl_add_u32 {v(vWd0)}, {v(vT0)}, 4, {v(vWd0)}")
        a(f"s_lshl_b32 s{sT}, {pitch_s}, 3")
        a(f"v_add_u32 {v(vWd1)}, s{sT}, {v(vWd0)}")
        self.tr_addresses(perm, swap_s)

    def tr_addresses(self, hstride, swap_s):
        a = self.a
        a(f"v_bfe_u32 {v(vT0)}, {v(vLane)}, 2, 2")
        a(f"v_lshlrev_b32 {v(vTrA)}, 7, {v(vT0)}")
        a(f"v_lshrrev_b32 {v(vT1)}, 5, {v(vLane)}")
        a(f"v_mul_lo_u32 {v(vT1)}, {hstride}, {v(vT1)}")
        a(f"v_add_u32 {v(vTrA)}, {v(vTrA)}, {v(vT1)}")
        a(f"v_lshlrev_b32 {v(vT0)}, 5, {v(vT0)}")
        a(f"v_and_b32 {v(vT0)}, 64, {v(vT0)}")
        a(f"v_lshlrev_b32 {v(vT1)}, 1, {v(vLane)}")
        a(f"v_and_b32 {v(vT1)}, 32, {v(vT1)}")
        a(f"v_and_b32 {v(vT2)}, 3, {v(vLane)}")
        a(f"v_lshlrev_b32 {v(vT2)}, 3, {v(vT2)}")
        a(f"v_or3_b32 {v(vT0)}, {v(vT0)}, {v(vT1)}, {v(vT2)}")
        a(f"s_lshl_b32 s{sT}, {swap_s}, 6")
        a(f"v_xor_b32 {v(vT0)}, s{sT}, {v(vT0)}")
        a(f"v_add3_u32 {v(vTrA)}, {v(vTrA)}, {v(vT0)}, s{sLw}")
        a(f"v_xor_b32 {v(vTrB)}, 64, {v(vTrA)}")

    def w2_stream(self):
        a = self.a
        a(f"s_mul_i32 s{sWbase}, s3, {448*4096}")
        a(f"s_lshl_b32 s{sT}, s{sTt}, 7")
        a(f"s_add_u32 s{sWbase}, s{sWbase}, s{sT}")
        a(f"s_mov_b32 s{sWstep}, 65536")
        a(f"s_add_u32 s{sWend}, s{sWbase}, {28*65536}")
        a(f"s_lshl_b32 s{sT}, s{sRot2}, 16")
        a(f"s_add_u32 s{sWoff}, s{sWbase}, s{sT}")

    def prologue(self):
        a, p = self.a, self.p
        a("s_cmp_ge_u32 s2, 256")
        a("s_cbranch_scc1 L_end")
        for dst, off in ((SRD_X, 0), (SRD_WS, 96), (SRD_WA, 48), (SRD_W2, 64), (SRD_B1, 56), (SRD_B2, 72), (SRD_OUT, 80)):
            a(f"s_load_dwordx2 s[{dst}:{dst+1}], s[0:1], {off}")
        if p["stamps"]:
            a(f"s_memrealtime s[{sClk}:{sClk+1}]")
        if p["prefetch_code"]:
            a(f"s_getpc_b64 s[{sT}:{sT+1}]")
            a(f"v_lshlrev_b32 {v(vT0)}, 7, v0")
            a(f"v_min_u32 {v(vT0)}, L_end-{KERNEL}-128, {v(vT0)}")
            a(f"v_mov_b32 {v(vT2)}, s{sT+1}")
            a(f"v_add_co_u32 {v(vT1)}, vcc, s{sT}, {v(vT0)}")
            a(f"v_addc_co_u32 {v(vT2)}, vcc, 0, {v(vT2)}, vcc")
            a.vmem(f"global_load_dword v255, {v(vT1,2)}, off", "code")
        a(f"v_lshrrev_b32 {v(vT0)}, 6, v0")
        a(f"v_and_b32 {v(vLane)}, 63, v0")
        a(f"v_readfirstlane_b32 s3, {v(vT0)}")
        a(f"v_lshlrev_b32 {v(vL16)}, 4, {v(vLane)}")
        for n, size in ((SRD_X, 2048*1024), (SRD_WS, WS_SIZE), (SRD_W2, 1792*4096), (SRD_B1, 3584), (SRD_B2, 4096), (SRD_OUT, 2048*1024)):
            a(f"s_mov_b32 s{n+2}, {size}")
            a(f"s_mov_b32 s{n+3}, 0x20000")
        a(f"s_mov_b32 s{SRD_WA+2}, {2048*3584}")
        a(f"s_mov_b32 s{SRD_WA+3}, 0x20000")
        a(f"s_lshl_b32 s{sT+2}, s2, 13")
        a(f"s_lshl_b32 s{sT+3}, s3, 11")
        a(f"s_add_u32 s{sT+2}, s{sT+2}, s{sT+3}")
        a(f"s_and_b32 s{sX}, s2, 7")
        a(f"s_lshr_b32 s{sIdx}, s2, 3")
        a("s_waitcnt lgkmcnt(0)")
        a.vmem(f"buffer_load_dwordx4 v[16:19], {v(vL16)}, {srd(SRD_X)}, s{sT+2} offen {p['xflags']}", "x")
        a.vmem(f"buffer_load_dwordx4 v[20:23], {v(vL16)}, {srd(SRD_X)}, s{sT+2} offen offset:1024 {p['xflags']}", "x")
        if p["stamps"]:
            a(f"s_mov_b32 s{sStamp}, s{sClk}")
        a(f"s_mov_b32 s{sT+9}, {WS_NONCE}")
        a(f"s_load_dword s{sFlag}, s[{SRD_WS}:{SRD_WS+1}], s{sT+9}")
        a(f"s_mul_i32 s{sT}, s{sIdx}, 37")
        a(f"s_lshr_b32 s{sT}, s{sT}, 8")
        a(f"s_mul_i32 s{sT+1}, s{sT}, 7")
        a(f"s_sub_u32 s{sT+1}, s{sIdx}, s{sT+1}")
        a(f"s_lshr_b32 s{sT+2}, s{sX}, 1")
        a(f"s_and_b32 s{sT+3}, s{sX}, 1")
        a(f"s_mul_i32 s{sFt}, s{sT+2}, 7")
        a(f"s_add_u32 s{sFt}, s{sFt}, s{sT+1}")
        a(f"s_lshl_b32 s{sT+4}, s{sT+3}, 2")
        a(f"s_add_u32 s{sDt1}, s{sT+4}, s{sT}")
        a(f"s_lshl2_add_u32 s{sT+5}, s{sT+1}, s{sT+2}")
        a(f"s_mul_i32 s{sT+5}, s{sT+5}, 293")
        a(f"s_lshr_b32 s{sT+5}, s{sT+5}, 8")
        a(f"s_lshl3_add_u32 s{sRot1}, s{sT}, s{sT+5}")
        a(f"s_add_u32 s{sRot1}, s{sRot1}, s{sT+4}")
        a(f"s_and_b32 s{sRot1}, s{sRot1}, 31")
        a(f"s_and_b32 s{sT}, s{sIdx}, 7")
        a(f"s_lshr_b32 s{sT+1}, s{sIdx}, 3")
        a(f"s_lshl3_add_u32 s{sTt}, s{sT+2}, s{sT}")
        a(f"s_add_u32 s{sDt2}, s{sT+4}, s{sT+1}")
        a(f"s_lshl2_add_u32 s{sT+5}, s{sT}, s{sT+2}")
        a(f"s_mul_i32 s{sT+5}, s{sT+5}, 7")
        a(f"s_lshr_b32 s{sT+5}, s{sT+5}, 3")
        a(f"s_mul_i32 s{sT+1}, s{sT+1}, 7")
        a(f"s_mul_i32 s{sT+3}, s{sT+3}, 3")
        a(f"s_add_u32 s{sRot2}, s{sT+5}, s{sT+1}")
        a(f"s_add_u32 s{sRot2}, s{sRot2}, s{sT+3}")
        a(f"s_sub_u32 s{sT}, s{sRot2}, 28")
        a(f"s_cselect_b32 s{sRot2}, s{sRot2}, s{sT}")
        a(f"s_lshl_b32 s{sC}, s{sX}, 2")
        a(f"s_add_u32 s{sC}, s{sC}, s{sIdx}")
        a(f"s_sub_u32 s{sC}, s{sC}, 28")
        a(f"s_lshr_b32 s{sWm}, s3, 1")
        a(f"s_and_b32 s{sWn}, s3, 1")
        a(f"s_lshl_b32 s{sLw}, s3, 15")
        a(f"s_add_u32 s{sLw}, s{sLw}, {L_RING}")
        a(f"s_mov_b32 s{s1024}, 1024")
        a(f"s_mov_b32 s{s2048}, 2048")
        a(f"s_mov_b32 s{sMask}, 0xffff0000")
        a(f"s_mov_b32 s{sOnes}, 0x3f803f80")
        a(f"s_mov_b32 s{sSpin}, 0")
        a(f"s_mov_b32 s{sL32}, 0")
        a(f"s_mov_b32 s{sL32+1}, 1")
        g, j = self.lab("gemm_stream"), self.lab("stream_done")
        a(f"s_cmp_lt_u32 s{sIdx}, 28")
        a(f"s_cbranch_scc1 {g}")
        self.w2_stream()
        a(f"s_mov_b32 s{SRD_WA}, s{SRD_W2}")
        a(f"s_mov_b32 s{SRD_WA+1}, s{SRD_W2+1}")
        a(f"s_mov_b32 s{sT+6}, 4096")
        a(f"s_mov_b32 s{sT+7}, 512")
        a(f"s_mov_b32 s{sT+8}, s{sWn}")
        a(f"s_branch {j}")
        a.label(g)
        a(f"s_mul_i32 s{sWbase}, s3, {512*3584}")
        a(f"s_lshl_b32 s{sT}, s{sFt}, 7")
        a(f"s_add_u32 s{sWbase}, s{sWbase}, s{sT}")
        a(f"s_mov_b32 s{sWstep}, {16*3584}")
        a(f"s_add_u32 s{sWend}, s{sWbase}, {32*16*3584}")
        a(f"s_mul_i32 s{sT}, s{sRot1}, {16*3584}")
        a(f"s_add_u32 s{sWoff}, s{sWbase}, s{sT}")
        a(f"s_mov_b32 s{sT+6}, 3584")
        a(f"s_mov_b32 s{sT+7}, 1024")
        a(f"s_mov_b32 s{sT+8}, s{sWm}")
        a.label(j)
        self.w_addresses(f"s{sT+6}", f"s{sT+7}", f"s{sT+8}")
        for i in range(p["nA"]):
            self.dma_slot(i, ("w", i))

    def phase0(self):
        a, p = self.a, self.p
        FS = p["FS"]
        X = (16, 20)
        F = (24, 32)
        B1c, B1s, TWc, TWs, A2, A3 = (40, 44), (48, 52), (56, 60), (64, 68), 72, 76
        t = 80
        K = 96
        M, D, RI, U = 98, 100, 102, 104
        S = (106, 107, 108, 109)
        XH = (112, 116)
        XN = (120, 124)
        vHw, vXw, vHr, vXr, vZw, vZr, vHf, vZf = 128, 129, 130, 131, 132, 133, 134, 135
        a(f"v_and_b32 {v(vT0)}, 15, {v(vLane)}")
        a(f"v_lshrrev_b32 {v(vT1)}, 4, {v(vLane)}")
        a(f"v_lshlrev_b32 {v(vT1)}, 2, {v(vT1)}")
        a(f"v_cvt_f32_u32 {v(vT2)}, {v(vT0)}")
        a(f"v_cvt_f32_u32 {v(vT1)}, {v(vT1)}")
        for hf in range(2):
            if hf:
                a(f"v_add_f32 {v(vT2)}, {hexf(16.0)}, {v(vT2)}")
            a(f"v_mul_f32 {v(vT3)}, {hexf(-1/32)}, {v(vT2)}")
            a(f"v_mul_f32 {v(vT4)}, {v(vT3)}, {v(vT1)}")
            self.packed_table(vT3, vT4, [0, 1, 2, 3, 16, 17, 18, 19], B1c[hf], B1s[hf], t)
            a(f"v_mul_f32 {v(vT3)}, {hexf(1/512)}, {v(vT2)}")
            a(f"v_mul_f32 {v(vT4)}, {v(vT3)}, {v(vT1)}")
            for i in range(4):
                self.sincos(vT4, TWc[hf] + i, TWs[hf] + i)
                if i < 3:
                    a(f"v_add_f32 {v(vT4)}, {v(vT4)}, {v(vT3)}")
        a(f"v_and_b32 {v(vT2)}, 7, {v(vT0)}")
        a(f"v_lshrrev_b32 {v(vT4)}, 3, {v(vT0)}")
        a(f"v_cvt_f32_u32 {v(vT2)}, {v(vT2)}")
        a(f"v_cvt_f32_u32 {v(vT4)}, {v(vT4)}")
        a(f"v_mul_f32 {v(vT3)}, {hexf(1/16)}, {v(vT2)}")
        a(f"v_mul_f32 {v(vT4)}, {hexf(0.25)}, {v(vT4)}")
        a(f"v_fmac_f32 {v(vT4)}, {v(vT3)}, {v(vT1)}")
        self.packed_table(vT3, vT4, [0, 1, 2, 3], A2, A2 + 2, t)
        a(f"v_cmp_eq_u32 vcc, 8, {v(vT0)}")
        a(f"v_mov_b32 {v(A3+2)}, 0")
        a(f"v_mov_b32 {v(A3+3)}, 0")
        a(f"v_mov_b32 {v(A3+1)}, 0xbc003c00")
        a(f"v_cndmask_b32 {v(A3)}, {v(A3+2)}, {v(A3+1)}, vcc")
        a(f"v_cndmask_b32 {v(A3+1)}, {v(A3+2)}, {v(A3+1)}, vcc")
        a(f"v_mov_b32 {v(K)}, {hexf(1/512)}")
        a(f"v_mov_b32 {v(K+1)}, {hexf(1e-5)}")
        a(f"s_mul_i32 s{sT}, s3, {2*HPITCH}")
        a(f"v_add_u32 {v(vHw)}, s{sT}, {v(vL16)}")
        a(f"s_lshl_b32 s{sT}, s3, 11")
        a(f"s_add_u32 s{sT+1}, s{sT}, {L_XROWS}")
        a(f"v_add_u32 {v(vXw)}, s{sT+1}, {v(vL16)}")
        a(f"v_lshl_add_u32 {v(vXr)}, {v(vLane)}, 3, s{sT+1}")
        a(f"v_bfe_u32 {v(vT1)}, {v(vLane)}, 2, 2")
        a(f"v_mul_u32_u24 {v(vHr)}, {HPITCH}, {v(vT1)}")
        a(f"v_lshrrev_b32 {v(vT1)}, 4, {v(vLane)}")
        a(f"v_lshl_add_u32 {v(vHr)}, {v(vT1)}, 5, {v(vHr)}")
        a(f"v_and_b32 {v(vT2)}, 3, {v(vLane)}")
        a(f"v_lshl_add_u32 {v(vHr)}, {v(vT2)}, 3, {v(vHr)}")
        a(f"s_lshl_b32 s{sT+1}, s3, 8")
        a(f"v_add_u32 {v(vHr)}, s{sT+1}, {v(vHr)}")
        a(f"s_add_u32 s{sT+1}, s{sT}, {L_ZPL}")
        a(f"v_lshl_add_u32 {v(vZw)}, {v(vT0)}, 3, s{sT+1}")
        a(f"v_lshrrev_b32 {v(vT2)}, 1, {v(vT1)}")
        a(f"v_lshl_add_u32 {v(vZw)}, {v(vT2)}, 2, {v(vZw)}")
        a(f"v_and_b32 {v(vT2)}, 1, {v(vT1)}")
        a(f"v_lshl_add_u32 {v(vZw)}, {v(vT2)}, 10, {v(vZw)}")
        a(f"s_lshl_b32 s{sT+1}, s3, 9")
        a(f"s_add_u32 s{sT+1}, s{sT+1}, {L_ZPL}")
        a(f"v_lshl_add_u32 {v(vZr)}, {v(vLane)}, 2, s{sT+1}")
        a(f"s_lshl_b32 s{sT}, s3, 8")
        a(f"s_add_u32 s{sT}, s{sT}, s2")
        a(f"s_mul_i32 s{sT}, s{sT}, {FS}")
        a(f"v_mul_u32_u24 {v(vT1)}, {1024*FS}, {v(vLane)}")
        a(f"s_add_u32 s{sT+1}, s{sT}, {WS_HF}")
        a(f"v_add_u32 {v(vHf)}, s{sT+1}, {v(vT1)}")
        a(f"s_add_u32 s{sT+1}, s{sT}, {WS_ZF}")
        a(f"v_add_u32 {v(vZf)}, s{sT+1}, {v(vT1)}")
        a(f"s_lshl_b32 s{sT+6}, s3, 19")
        a(f"s_lshl_b32 s{sT+7}, s2, 10")
        a(f"s_add_u32 s{sT+6}, s{sT+6}, s{sT+7}")
        a(f"s_add_u32 s{sT+7}, s{sT+6}, {1 << 18}")
        a(f"s_lshl_b32 s{sT+8}, s2, 13")
        a(f"s_lshl_b32 s{sT+9}, s3, 11")
        a(f"s_add_u32 s{sT+8}, s{sT+8}, s{sT+9}")
        a(f"s_add_u32 s{sT+8}, s{sT+8}, {WS_Z}")
        a("s_waitcnt lgkmcnt(0)")
        a(f"s_mul_i32 s{sFlag}, s{sFlag}, 0x9e3779b1")
        a(f"s_add_u32 s{sFlag}, s{sFlag}, 0x7f4a7c15")
        a(f"v_mov_b32 {v(vFlagV)}, s{sFlag}")
        self.stamp(1)
        a.wait(vm="x")
        self.stamp(2)
        sel = (LO, HI)

        def dots(dst, src, other):
            for k in range(4):
                for r in range(2):
                    o = f"s{sOnes}" if other else v(src[r] + k)
                    c = "0" if k == 0 else v(dst[r])
                    a(f"v_dot2_f32_bf16 {v(dst[r])}, {v(src[r]+k)}, {o}, {c}")

        def unpack_rows(src):
            out = []
            for r in range(2):
                for k in range(4):
                    out.append(f"v_lshlrev_b32 {v(F[r]+2*k)}, 16, {v(src[r]+k)}")
                    out.append(f"v_and_b32 {v(F[r]+2*k+1)}, s{sMask}, {v(src[r]+k)}")
            return out

        def rinv_from_var():
            self.round_pair(RI, U)
            a(f"v_pk_add_f32 {v(RI,2)}, {v(RI,2)}, {v(K,2)} {HI}")
            self.round_pair(RI, U)
            a(f"v_sqrt_f32 {v(RI)}, {v(RI)}")
            a(f"v_sqrt_f32 {v(RI+1)}, {v(RI+1)}")
            self.round_pair(RI, U)
            a(f"v_rcp_f32 {v(RI)}, {v(RI)}")
            a(f"v_rcp_f32 {v(RI+1)}, {v(RI+1)}")

        def center():
            for r in range(2):
                for k in range(4):
                    a(f"v_pk_add_f32 {v(F[r]+2*k,2)}, {v(F[r]+2*k,2)}, {v(M,2)} {sel[r]} {NEG1}")

        def round_rows(tmp):
            out = []
            for r in range(2):
                for k in range(4):
                    out.append(f"v_cvt_pk_bf16_f32 {v(tmp[r]+k)}, {v(F[r]+2*k)}, {v(F[r]+2*k+1)}")
            return out + unpack_rows(tmp)

        def scale_pack(dst):
            for r in range(2):
                for k in range(4):
                    a(f"v_pk_mul_f32 {v(F[r]+2*k,2)}, {v(F[r]+2*k,2)}, {v(RI,2)} {sel[r]}")
                for k in range(4):
                    a(f"v_cvt_pk_bf16_f32 {v(dst[r]+k)}, {v(F[r]+2*k)}, {v(F[r]+2*k+1)}")

        dots(S[:2], X, True)
        un = unpack_rows(X)
        for u in un[:3]:
            a(u)
        self.reduce_wave(S[:2], sT, un[3:])
        a(f"v_pk_mul_f32 {v(D,2)}, s[{sT}:{sT+1}], {v(K,2)} {LO}")
        a(f"v_cvt_pk_bf16_f32 {v(U)}, {v(D)}, {v(D+1)}")
        self.unpack(M, M + 1, U)
        center()
        a(f"v_pk_add_f32 {v(D,2)}, {v(D,2)}, {v(M,2)} {NEG1}")
        for k in range(4):
            for r in range(2):
                q = v(t + 2*r, 2)
                f = v(F[r] + 2*k, 2)
                a(f"v_pk_mul_f32 {q}, {f}, {f}" if k == 0 else f"v_pk_fma_f32 {q}, {f}, {f}, {q}")
        for r in range(2):
            a(f"v_add_f32 {v(S[r])}, {v(t+2*r)}, {v(t+2*r+1)}")
        rr = round_rows(X)
        a(rr[0])
        self.reduce_wave(S[:2], sT, rr[1:])
        a(f"v_pk_mul_f32 {v(RI,2)}, s[{sT}:{sT+1}], {v(K,2)} {LO}")
        a(f"v_pk_fma_f32 {v(RI,2)}, {v(D,2)}, {v(D,2)}, {v(RI,2)} neg_lo:[1,0,0] neg_hi:[1,0,0]")
        rinv_from_var()
        scale_pack(XN)
        dots(S[:2], XN, True)
        dots(S[2:], XN, False)
        un = unpack_rows(XN)
        for u in un[:3]:
            a(u)
        self.reduce_wave(S, sT, un[3:])
        a(f"v_pk_mul_f32 {v(D,2)}, s[{sT}:{sT+1}], {v(K,2)} {LO}")
        a(f"v_pk_mul_f32 {v(RI,2)}, s[{sT+2}:{sT+3}], {v(K,2)} {LO}")
        a(f"v_cvt_pk_bf16_f32 {v(U)}, {v(D)}, {v(D+1)}")
        a(f"v_pk_fma_f32 {v(RI,2)}, {v(D,2)}, {v(D,2)}, {v(RI,2)} neg_lo:[1,0,0] neg_hi:[1,0,0]")
        self.unpack(M, M + 1, U)
        rinv_from_var()
        center()
        for u in round_rows(X):
            a(u)
        scale_pack(X)
        for r in range(2):
            a.ds(f"ds_write_b128 {v(vHw)}, {v(X[r],4)} offset:{L_HROWS + r*HPITCH}", "hw")
        for u in unpack_rows(XN):
            a(u)
        for r in range(2):
            for k in range(4):
                a(f"v_cvt_pk_f16_f32 {v(XH[r]+k)}, {v(F[r]+2*k)}, {v(F[r]+2*k+1)}")
        a.wait(lg="all")
        a("s_barrier")
        for b in range(2):
            for jj in range(2):
                a.ds(f"ds_read_b64_tr_b16 {v(X[b]+2*jj,2)}, {v(vHr)} offset:{L_HROWS + jj*4*HPITCH + b*128}", ("hr", b))
        for r in range(2):
            a.ds(f"ds_write_b128 {v(vXw)}, {v(XH[r],4)} offset:{r*1024}", "xw")
        for b in range(2):
            a.wait(lg=("hr", b))
            a.vmem(f"buffer_store_dwordx4 {v(X[b],4)}, {v(vL16)}, {srd(SRD_WS)}, s{sT+6+b} offen sc1", "hst")
        self.stamp(3)
        AX = (24, 28)
        Y = ((136, 140, 144, 148), (152, 156, 160, 164))
        B2 = ((176, 180), (184, 188))
        C2 = ((192, 196), (200, 204))
        C3 = (208, 212)
        for r in range(2):
            for jj in range(2):
                a.ds(f"ds_read_b64_tr_b16 {v(AX[r]+2*jj,2)}, {v(vXr)} offset:{r*1024 + jj*512}", ("xr", r))
        slots = list(range(p["nA"], p["nB"]))
        for r in range(2):
            a.wait(lg=("xr", r))
            for hf in range(2):
                a(f"v_mfma_f32_16x16x32_f16 {v(Y[r][2*hf],4)}, {v(AX[r],4)}, {v(B1c[hf],4)}, 0")
                a(f"v_mfma_f32_16x16x32_f16 {v(Y[r][2*hf+1],4)}, {v(AX[r],4)}, {v(B1s[hf],4)}, 0")
        for i in slots:
            self.dma_slot(i, ("w", i))
        for r in range(2):
            for hf in range(2):
                yr, yi = Y[r][2*hf], Y[r][2*hf+1]
                for k in (0, 2):
                    a(f"v_pk_mul_f32 {v(t+k,2)}, {v(yr+k,2)}, {v(TWc[hf]+k,2)}")
                    a(f"v_pk_mul_f32 {v(t+4+k,2)}, {v(yi+k,2)}, {v(TWc[hf]+k,2)}")
                for k in (0, 2):
                    a(f"v_pk_fma_f32 {v(t+k,2)}, {v(yi+k,2)}, {v(TWs[hf]+k,2)}, {v(t+k,2)}")
                    a(f"v_pk_fma_f32 {v(t+4+k,2)}, {v(yr+k,2)}, {v(TWs[hf]+k,2)}, {v(t+4+k,2)} neg_lo:[1,0,0] neg_hi:[1,0,0]")
                for k in range(4):
                    a(f"v_cvt_pk_f16_f32 {v(B2[r][hf]+k)}, {v(t+2*k)}, {v(t+2*k+1)}")
        for r in range(2):
            a(f"v_mfma_f32_16x16x32_f16 {v(C3[r],4)}, {v(A3,4)}, {v(B2[r][0],4)}, 0")
            for hf in range(2):
                a(f"v_mfma_f32_16x16x32_f16 {v(C2[r][hf],4)}, {v(A2,4)}, {v(B2[r][hf],4)}, 0")
        a.wait(vm="hst")
        self.flag_store(vHf, 4)
        self.stamp(4)
        for r in range(2):
            a(f"v_cndmask_b32 {v(C2[r][0])}, {v(C2[r][0])}, {v(C3[r])}, s[{sL32}:{sL32+1}]")
        for hf in range(2):
            for i in range(4):
                a(f"v_cvt_pk_f16_f32 {v(t+4*hf+i)}, {v(C2[0][hf]+i)}, {v(C2[1][hf]+i)}")
                a.ds(f"ds_write_b32 {v(vZw)}, {v(t+4*hf+i)} offset:{128*hf + 256*i}", "zw")
        a.wait(lg="all")
        a("s_barrier")
        for b in range(2):
            for q in range(2):
                a.ds(f"ds_read2st64_b32 {v(X[b]+2*q,2)}, {v(vZr)} offset0:{b+16*q} offset1:{b+16*q+8}", ("zr", b))
        for b in range(2):
            a.wait(lg=("zr", b))
            a.vmem(f"buffer_store_dwordx4 {v(X[b],4)}, {v(vL16)}, {srd(SRD_WS)}, s{sT+8} offen offset:{1024*b} sc1", "zst")
        rest = list(range(p["nB"], 14))
        for i in rest[:3]:
            self.dma_slot(i, ("w", i))
        a.wait(vm="zst")
        self.flag_store(vZf, 2)
        a("s_barrier")
        for i in rest[3:]:
            self.dma_slot(i, ("w", i))
        self.stamp(5)

    def main_loop(self, n, first_late, jstride, w_is_a, tail):
        a, p = self.a, self.p
        R = p["R"]
        for i in range(n):
            a.wait(vm=("act", i), lg=(("tr", i) if i >= first_late else None))
            ring = vRing + 8 * (i % R)
            for j in range(4):
                jm, jn = j >> 1, j & 1
                A = ag(8*i + 4*jm, 4) if w_is_a else v(ring + 4*jm, 4)
                B = v(ring + 4*jn, 4) if w_is_a else ag(8*i + 4*jn, 4)
                acc = v(vAcc + 16*j, 16)
                a(f"v_mfma_f32_32x32x16_bf16 {acc}, {A}, {B}, {'0' if i == 0 else acc}")
                if j == 0 and first_late + i < n:
                    self.tr_slot(i, 8 * (first_late + i), jstride, ("tr", first_late + i))
            if i + R < n:
                self.act_load(i + R, ("act", i + R))
            tail(i)

    def reduce_scatter(self, mid=None):
        a = self.a
        T = vTmp
        a(f"s_lshl_b32 s{sT}, s3, 13")
        a(f"v_add_u32 {v(vT0)}, s{sT}, {v(vL16)}")
        a(f"v_add_u32 {v(vT1)}, s{sLw}, {v(vL16)}")
        for j in (1, 2, 3):
            for q in range(4):
                addr, off = (vT0, (j-1)*4096) if j < 3 else (vT1, L_TAIL)
                a.ds(f"ds_write_b128 {v(addr)}, {v(vAcc+16*j+4*q,4)} offset:{off + q*1024}", "rw")
        a(f"v_xor_b32 {v(vT2)}, {1 << 13}, {v(vT0)}")
        a(f"v_xor_b32 {v(vT3)}, {2 << 13}, {v(vT0)}")
        a(f"s_xor_b32 s{sT}, s3, 3")
        a(f"s_lshl_b32 s{sT}, s{sT}, 15")
        a(f"s_add_u32 s{sT}, s{sT}, {L_RING}")
        a(f"v_add_u32 {v(vT1)}, s{sT}, {v(vL16)}")
        if mid:
            mid()
        a.wait(lg="all")
        a("s_barrier")
        for q in range(4):
            for j, addr, off in ((1, vT2, 0), (2, vT3, 4096), (3, vT1, L_TAIL)):
                a.ds(f"ds_read_b128 {v(vAcc+16*j+4*q,4)}, {v(addr)} offset:{off + q*1024}", ("rr", q))
        for q in range(4):
            a.wait(lg=("rr", q))
            for k in (0, 2):
                r = 4*q + k
                a(f"v_pk_add_f32 {v(vAcc+r,2)}, {v(vAcc+r,2)}, {v(vAcc+16+r,2)}")
                a(f"v_pk_add_f32 {v(vAcc+32+r,2)}, {v(vAcc+32+r,2)}, {v(vAcc+48+r,2)}")
            for k in (0, 2):
                r = 4*q + k
                a(f"v_pk_add_f32 {v(vAcc+r,2)}, {v(vAcc+r,2)}, {v(vAcc+32+r,2)}")

    def gemm1(self):
        a, p = self.a, self.p
        FS, R = p["FS"], p["R"]
        vB, vBf, vGf = vTmp, vTmp + 8, vTmp + 24
        for i in (14, 15):
            self.dma_slot(i, ("w", i))
        a(f"v_lshrrev_b32 {v(vT0)}, 5, {v(vLane)}")
        a(f"v_lshlrev_b32 {v(vT1)}, 3, {v(vT0)}")
        a(f"s_lshl_b32 s{sT}, s{sFt}, 7")
        a(f"s_lshl_b32 s{sT+1}, s{sWm}, 6")
        a(f"s_add_u32 s{sT}, s{sT}, s{sT+1}")
        for j in range(4):
            a.vmem(f"buffer_load_dwordx2 {v(vB+2*j,2)}, {v(vT1)}, {srd(SRD_B1)}, s{sT} offen offset:{16*j}", "b1")
        a(f"v_and_b32 {v(vT1)}, 31, {v(vLane)}")
        a(f"v_lshlrev_b32 {v(vT1)}, 4, {v(vT1)}")
        a(f"v_lshl_add_u32 {v(vT1)}, {v(vT0)}, 10, {v(vT1)}")
        a(f"s_lshl_b32 s{sT}, s{sWn}, 9")
        a(f"v_add_u32 {v(vA0)}, s{sT}, {v(vT1)}")
        a(f"v_xor_b32 {v(vA1)}, 0x200, {v(vA0)}")
        a(f"s_lshl_b32 s{sAbase}, s{sDt1}, 18")
        a(f"s_lshl_b32 s{sT}, s3, 16")
        a(f"s_add_u32 s{sAbase}, s{sAbase}, s{sT}")
        a(f"s_add_u32 s{sAend}, s{sAbase}, 65536")
        a(f"s_lshl_b32 s{sT}, s{sRot1}, 11")
        a(f"s_add_u32 s{sAoff}, s{sAbase}, s{sT}")
        a(f"s_lshr_b32 s{sT}, s{sX}, 1")
        a(f"s_lshl_b32 s{sT}, s{sT}, 10")
        a(f"s_lshr_b32 s{sT+1}, s{sDt1}, 1")
        a(f"s_lshl_b32 s{sT+1}, s{sT+1}, 8")
        a(f"s_add_u32 s{sT}, s{sT}, s{sT+1}")
        a(f"s_lshl_b32 s{sT+1}, s3, 6")
        a(f"s_add_u32 s{sT}, s{sT}, s{sT+1}")
        a(f"s_mul_i32 s{sT}, s{sT}, {FS}")
        a(f"s_add_u32 s{sT}, s{sT}, {WS_HF}")
        a(f"v_mul_u32_u24 {v(vPa)}, {FS}, {v(vLane)}")
        a(f"v_add_u32 {v(vPa)}, s{sT}, {v(vPa)}")
        a(f"s_mul_i32 s{sT}, s{sDt1}, 112")
        a(f"s_lshl2_add_u32 s{sT}, s{sFt}, s{sT}")
        a(f"s_add_u32 s{sT}, s{sT}, s3")
        a(f"s_mul_i32 s{sT}, s{sT}, {FS}")
        a(f"s_add_u32 s{sT}, s{sT}, {WS_GF}")
        a(f"v_mul_u32_u24 {v(vGf)}, {1024*FS}, {v(vLane)}")
        a(f"v_add_u32 {v(vGf)}, s{sT}, {v(vGf)}")
        for i in range(17):
            if i < 16:
                a.wait(vm=("w", i))
                self.tr_slot(i, 8 * i, 512, ("tr", i))
            if i >= 1:
                a.wait(lg=("tr", i - 1))
                self.dma_slot(i - 1, ("w", 15 + i))
            if i == 16 - p["pollgap"]:
                self.poll_issue("poll")
        self.stamp(6)
        self.poll_check("poll")
        self.stamp(7)
        for i in range(R):
            self.act_load(i, ("act", i))
        for j in range(8):
            self.unpack(vBf + 2*j, vBf + 2*j + 1, vB + j)

        def tail(i):
            if i == 32 - R - 1:
                self.w2_stream()
                a(f"s_mov_b32 s{sT+6}, 4096")
                a(f"s_mov_b32 s{sT+7}, 512")
                self.w_addresses(f"s{sT+6}", f"s{sT+7}", f"s{sWn}")
            k = i - (32 - R)
            if 0 <= k < p["w2pre"]:
                self.dma_slot(k, ("w2", k), SRD_W2)
        self.main_loop(32, 16, 512, True, tail)
        for k in range(R, p["w2pre"]):
            self.dma_slot(k, ("w2", k), SRD_W2)
        self.stamp(8)
        self.reduce_scatter()
        a("s_barrier")
        c0 = -2 * 1.4426950408889634 * 0.7978845608028654
        a(f"s_mov_b32 s{sK0}, {hexf(c0*0.044715)}")
        a(f"v_mov_b32 {v(vT0)}, {hexf(c0)}")
        a(f"s_mul_i32 s{sT}, s{sDt1}, {112*2048}")
        a(f"s_lshl_b32 s{sT+1}, s{sFt}, 13")
        a(f"s_add_u32 s{sT}, s{sT}, s{sT+1}")
        a(f"s_lshl_b32 s{sT+1}, s{sWm}, 12")
        a(f"s_add_u32 s{sT}, s{sT}, s{sT+1}")
        a(f"s_lshl_b32 s{sT+1}, s{sWn}, 10")
        a(f"s_add_u32 s{sT}, s{sT}, s{sT+1}")
        a(f"s_add_u32 s{sT}, s{sT}, {WS_G}")
        E, P = vAcc + 16, vAcc + 32
        for q in range(2):
            prs = [vAcc + 8*q + 2*k for k in range(4)]
            if p["mimic"]:
                for k, r in enumerate(prs):
                    a(f"v_cvt_pk_bf16_f32 {v(P+k)}, {v(r)}, {v(r+1)}")
                for k, r in enumerate(prs):
                    self.unpack(r, r + 1, P + k)
            for r in prs:
                a(f"v_pk_add_f32 {v(r,2)}, {v(r,2)}, {v(vBf+r-vAcc,2)}")
            if p["mimic"]:
                for k, r in enumerate(prs):
                    a(f"v_cvt_pk_bf16_f32 {v(P+k)}, {v(r)}, {v(r+1)}")
                for k, r in enumerate(prs):
                    self.unpack(r, r + 1, P + k)
            for k, r in enumerate(prs):
                a(f"v_pk_mul_f32 {v(E+2*k,2)}, {v(r,2)}, {v(r,2)}")
            for k, r in enumerate(prs):
                a(f"v_pk_fma_f32 {v(E+2*k,2)}, {v(E+2*k,2)}, s[{sK0}:{sK0+1}], {v(vT0-1,2)} op_sel:[0,0,1] op_sel_hi:[1,0,1]")
            for k, r in enumerate(prs):
                a(f"v_pk_mul_f32 {v(E+2*k,2)}, {v(E+2*k,2)}, {v(r,2)}")
            for k in range(8):
                a(f"v_exp_f32 {v(E+k)}, {v(E+k)}")
            for k in range(4):
                a(f"v_pk_add_f32 {v(E+2*k,2)}, {v(E+2*k,2)}, 1.0 op_sel_hi:[1,0]")
            for k in range(8):
                a(f"v_rcp_f32 {v(E+k)}, {v(E+k)}")
            for k, r in enumerate(prs):
                a(f"v_pk_mul_f32 {v(E+2*k,2)}, {v(E+2*k,2)}, {v(r,2)}")
            for k in range(4):
                a(f"v_cvt_pk_bf16_f32 {v(P+4+4*q+k)}, {v(E+2*k)}, {v(E+2*k+1)}")
            a.vmem(f"buffer_store_dwordx4 {v(P+4+4*q,4)}, {v(vL16)}, {srd(SRD_WS)}, s{sT} offen offset:{2048*q} sc1", "gst")
        self.stamp(9)
        nxt = p["w2pre"]
        for k in range(nxt, min(14, nxt + p["w2mid"])):
            self.dma_slot(k, ("w2", k), SRD_W2)
            nxt = k + 1
        moved = 0
        for k in range(min(4, p["w2pre"])):
            a.wait(vm=("w2", k))
            self.tr_slot(k, 8 * k, 1024, ("tr", k))
            moved = k + 1
        a.wait(vm="gst")
        self.flag_store(vGf, 4)
        self.stamp(10)
        for k in range(nxt, 14):
            self.dma_slot(k, ("w2", k), SRD_W2)
        for i in range(15):
            if moved <= i < 14:
                a.wait(vm=("w2", i))
                self.tr_slot(i, 8 * i, 1024, ("tr", i))
            if i >= 1:
                a.wait(lg=("tr", i - 1))
                self.dma_slot(i - 1, ("w2", 13 + i), SRD_W2)

    def fft(self):
        a, p = self.a, self.p
        FS = p["FS"]
        C32, S32, N32, TWc, TWs, K2c, K2s = 16, 24, 32, 40, 56, 72, 88
        ZU, Y, R0 = 104, 136, 200
        t = 232
        vZre, vZim, vD0, vD1, vPw, vPr, vSf, vNy = 240, 241, 242, 243, 244, 245, 246, 247
        for i in range(14):
            a.wait(vm=("w", i))
            self.tr_slot(i, 8 * i, 1024, ("tr", i))
        a(f"s_and_b32 s{sT}, s{sX}, 1")
        a(f"s_lshl_b32 s{sT}, s{sT}, 10")
        a(f"s_lshr_b32 s{sT+1}, s{sC}, 3")
        a(f"s_lshl_b32 s{sT+1}, s{sT+1}, 8")
        a(f"s_add_u32 s{sT}, s{sT}, s{sT+1}")
        a(f"s_lshl_b32 s{sT+1}, s3, 6")
        a(f"s_add_u32 s{sT}, s{sT}, s{sT+1}")
        a(f"s_mul_i32 s{sT}, s{sT}, {FS}")
        a(f"s_add_u32 s{sT}, s{sT}, {WS_ZF}")
        a(f"v_mul_u32_u24 {v(vPa)}, {FS}, {v(vLane)}")
        a(f"v_add_u32 {v(vPa)}, s{sT}, {v(vPa)}")
        a(f"v_lshrrev_b32 {v(vT0)}, 5, {v(vLane)}")
        a(f"v_xor_b32 {v(vT1)}, {v(vT0)}, {v(vLane)}")
        a(f"v_and_b32 {v(vT1)}, 3, {v(vT1)}")
        a(f"v_lshrrev_b32 {v(vT2)}, 2, {v(vLane)}")
        a(f"v_lshlrev_b32 {v(vT2)}, 13, {v(vT2)}")
        a(f"v_lshl_add_u32 {v(vD0)}, {v(vT1)}, 4, {v(vT2)}")
        a(f"v_xor_b32 {v(vD1)}, 32, {v(vD0)}")
        a(f"v_bfe_u32 {v(vT1)}, {v(vLane)}, 2, 2")
        a(f"v_mul_u32_u24 {v(vZre)}, {512+16}, {v(vT1)}")
        a(f"v_lshl_add_u32 {v(vZre)}, {v(vT0)}, 12, {v(vZre)}")
        a(f"v_bfe_u32 {v(vT1)}, {v(vLane)}, 4, 1")
        a(f"v_lshl_add_u32 {v(vZre)}, {v(vT1)}, 7, {v(vZre)}")
        a(f"v_bfe_u32 {v(vT1)}, {v(vLane)}, 1, 1")
        a(f"v_lshl_add_u32 {v(vZre)}, {v(vT1)}, 6, {v(vZre)}")
        a(f"v_and_b32 {v(vT1)}, 1, {v(vLane)}")
        a(f"v_lshl_add_u32 {v(vZre)}, {v(vT1)}, 3, {v(vZre)}")
        a(f"v_add_u32 {v(vZre)}, s{sLw}, {v(vZre)}")
        a(f"v_and_b32 {v(vT1)}, 31, {v(vLane)}")
        a(f"v_lshlrev_b32 {v(vPw)}, 2, {v(vT1)}")
        a(f"v_lshl_add_u32 {v(vPw)}, {v(vT0)}, 10, {v(vPw)}")
        a(f"v_lshlrev_b32 {v(vNy)}, 2, {v(vPw)}")
        a(f"s_lshl_b32 s{sT}, s3, 13")
        a(f"v_add_u32 {v(vPw)}, s{sT}, {v(vPw)}")
        a(f"s_lshl_b32 s{sT}, s3, 11")
        a(f"v_lshl_add_u32 {v(vPr)}, {v(vLane)}, 2, s{sT}")
        a(f"s_lshl2_add_u32 s{sT}, s{sC}, s3")
        a(f"s_mul_i32 s{sT}, s{sT}, {FS}")
        a(f"s_add_u32 s{sT}, s{sT}, {WS_SF}")
        a(f"v_mul_u32_u24 {v(vSf)}, {128*FS}, {v(vLane)}")
        a(f"v_add_u32 {v(vSf)}, s{sT}, {v(vSf)}")
        a(f"v_cvt_f32_u32 {v(vT1)}, {v(vT1)}")
        a(f"v_cvt_f32_u32 {v(vT0)}, {v(vT0)}")
        a(f"v_mul_f32 {v(vT2)}, {hexf(1/32)}, {v(vT1)}")
        a(f"v_mul_f32 {v(vT3)}, {v(vT2)}, {v(vT0)}")
        a(f"v_mul_f32 {v(vT3)}, {hexf(8.0)}, {v(vT3)}")
        self.packed_table(vT2, vT3, [16*ks + i for ks in range(2) for i in range(8)], C32, S32, t)
        for k in range(8):
            a(f"v_xor_b32 {v(N32+k)}, 0x80008000, {v(S32+k)}")
        self.poll_issue("poll")
        a(f"v_mul_f32 {v(vT2)}, {hexf(1/2048)}, {v(vT1)}")
        a(f"v_mul_f32 {v(vT3)}, {v(vT2)}, {v(vT0)}")
        a(f"v_mul_f32 {v(vT3)}, 4.0, {v(vT3)}")
        self.packed_table(vT2, vT3, [32*mt + 8*j + i for mt in range(2) for j in range(4) for i in range(4)], TWc, TWs, t)
        self.stamp(6)
        self.poll_check("poll")
        a.wait(lg="all")
        a("s_barrier")
        self.stamp(7)
        a(f"s_lshl_b32 s{sT}, s{sC}, 8")
        a(f"s_lshl_b32 s{sT+1}, s3, 6")
        a(f"s_add_u32 s{sT}, s{sT}, s{sT+1}")
        a(f"s_add_u32 s{sT}, s{sT}, {WS_Z}")
        a(f"s_mov_b32 m0, s{sLw}")
        for i in range(16):
            a.vmem(f"buffer_load_dwordx4 {v(vD1 if i & 1 else vD0)}, {srd(SRD_WS)}, s{sT} offen sc1 lds", "zi")
            if i < 15:
                a(f"s_add_u32 m0, m0, s{s1024}")
                a(f"s_add_u32 s{sT}, s{sT}, {16*8192}")
        a(f"s_or_b32 s{sT}, s{sC}, s3")
        a(f"s_cmp_eq_u32 s{sT}, 0")
        a(f"s_cselect_b32 s{sSpecial}, 1, 0")
        nn = self.lab("no_nonce")
        a(f"s_cbranch_scc0 {nn}")
        a(f"v_mov_b32 {v(vT4)}, {WS_NONCE}")
        a("s_mov_b64 exec, 1")
        a(f"buffer_store_dword {v(vFlagV)}, {v(vT4)}, {srd(SRD_WS)}, 0 offen sc1")
        a("s_mov_b64 exec, -1")
        a.label(nn)
        for u in range(2):
            a(f"v_fma_f32 {v(vT2)}, {v(vT1)}, 2.0, {'1.0' if u else '0'}")
            a(f"v_mul_f32 {v(vT2)}, {hexf(1/64)}, {v(vT2)}")
            a(f"v_mul_f32 {v(vT3)}, {v(vT2)}, {v(vT0)}")
            a(f"v_mul_f32 {v(vT3)}, 4.0, {v(vT3)}")
            self.packed_table(vT2, vT3, [16*q + 8*(i >> 2) + (i & 3) for q in range(2) for i in range(8)], K2c + 8*u, K2s + 8*u, t)
        a(f"s_sub_u32 s{sPass}, 1, s{sSpecial}")
        a(f"s_lshl_b32 s{sT}, s{sSpecial}, 4")
        a(f"v_xor_b32 {v(vZre)}, s{sT}, {v(vZre)}")
        a.wait(vm="all")
        self.stamp(8)
        top, nz, p0, p1, nxt = (self.lab(s) for s in ("pass", "keep_im", "nyq", "first", "next"))
        a.label(top)
        a(f"v_xor_b32 {v(vZim)}, 16, {v(vZre)}")
        for mt in range(2):
            for ri, addr in ((0, vZre), (1, vZim)):
                for ks in range(2):
                    for jj in range(2):
                        a.ds(f"ds_read_b64_tr_b16 {v(ZU+16*mt+8*ri+4*ks+2*jj,2)}, {v(addr)} offset:{ks*8192+jj*2048+mt*256}", ("z", mt))
            if mt == 0:
                a(f"s_cmp_lt_u32 s{sPass}, 2")
                a(f"s_cselect_b32 s{sT}, s{sSpecial}, 0")
                a(f"s_cmp_eq_u32 s{sT}, 0")
        a(f"s_cbranch_scc1 {nz}")
        a("s_waitcnt lgkmcnt(0)")
        for mt in range(2):
            for k in range(8):
                a(f"v_mov_b32 {v(ZU+16*mt+8+k)}, 0")
        a.label(nz)
        for mt in range(2):
            a.wait(lg=("z", mt))
            yr, yi = v(Y + 32*mt, 16), v(Y + 32*mt + 16, 16)
            for ks in range(2):
                zr, zi = v(ZU + 16*mt + 4*ks, 4), v(ZU + 16*mt + 8 + 4*ks, 4)
                a(f"v_mfma_f32_32x32x16_f16 {yr}, {zr}, {v(C32+4*ks,4)}, {'0' if ks == 0 else yr}")
                a(f"v_mfma_f32_32x32x16_f16 {yi}, {zi}, {v(C32+4*ks,4)}, {'0' if ks == 0 else yi}")
                a(f"v_mfma_f32_32x32x16_f16 {yr}, {zi}, {v(S32+4*ks,4)}, {yr}")
                a(f"v_mfma_f32_32x32x16_f16 {yi}, {zr}, {v(N32+4*ks,4)}, {yi}")
        for mt in range(2):
            yr, yi = Y + 32*mt, Y + 32*mt + 16
            for k in range(8):
                a(f"v_cvt_pk_f16_f32 {v(yr+k)}, {v(yr+2*k)}, {v(yr+2*k+1)}")
            for k in range(8):
                a(f"v_cvt_pk_f16_f32 {v(yi+k)}, {v(yi+2*k)}, {v(yi+2*k+1)}")
            for k in range(8):
                a(f"v_pk_mul_f16 {v(yr+8+k)}, {v(yr+k)}, {v(TWc+8*mt+k)}")
                a(f"v_pk_mul_f16 {v(yi+8+k)}, {v(yi+k)}, {v(TWc+8*mt+k)}")
            for k in range(8):
                a(f"v_pk_fma_f16 {v(yr+8+k)}, {v(yi+k)}, {v(TWs+8*mt+k)}, {v(yr+8+k)}")
                a(f"v_pk_fma_f16 {v(yi+8+k)}, {v(yr+k)}, {v(TWs+8*mt+k)}, {v(yi+8+k)} neg_lo:[1,0,0] neg_hi:[1,0,0]")
        for u in range(2):
            for ri in range(2):
                for k in range(8):
                    a(f"v_pk_add_f16 {v(ZU+16*u+8*ri+k)}, {v(Y+16*ri+8+k)}, {v(Y+32+16*ri+8+k)} {NEG1 if u else ''}")
        for ri in range(2):
            for q in range(2):
                for u in range(2):
                    acc = v(Y + 16*u, 16)
                    kc = (K2s if ri else K2c) + 8*u + 4*q
                    a(f"v_mfma_f32_32x32x16_f16 {acc}, {v(kc,4)}, {v(ZU+16*u+8*ri+4*q,4)}, {'0' if ri + q == 0 else acc}")
        a(f"s_cmp_eq_u32 s{sPass}, 1")
        a(f"s_cbranch_scc1 {p1}")
        a(f"s_cmp_eq_u32 s{sPass}, 0")
        a(f"s_cbranch_scc1 {p0}")
        for u in range(2):
            for k in range(16):
                a(f"v_cvt_pk_bf16_f32 {v(R0+16*u+k)}, {v(R0+16*u+k)}, {v(Y+16*u+k)}")
                a.ds(f"ds_write_b32 {v(vPw)}, {v(R0+16*u+k)} offset:{128*u + 256*(8*(k >> 2) + (k & 3))}", "pw")
        a(f"s_branch {nxt}")
        a.label(p0)
        for u in range(2):
            for k in range(16):
                a(f"v_cvt_pk_bf16_f32 {v(R0+16*u+k)}, {v(Y+16*u+k)}, {v(Y+16*u+k)}")
                a(f"s_mov_b32 s{sT}, {WS_S + 32*32768 + 4*(128*u + 256*(8*(k >> 2) + (k & 3)))}")
                a(f"buffer_store_dword {v(R0+16*u+k)}, {v(vNy)}, {srd(SRD_WS)}, s{sT} offen sc1")
        a(f"v_xor_b32 {v(vZre)}, 16, {v(vZre)}")
        a(f"s_mov_b32 s{sPass}, 1")
        a("s_nop 1")
        a(f"s_branch {top}")
        a.label(p1)
        for k in range(0, 32, 2):
            a(f"v_mov_b64 {v(R0+k,2)}, {v(Y+k,2)}")
        a(f"v_xor_b32 {v(vZre)}, 32, {v(vZre)}")
        a(f"s_mov_b32 s{sPass}, 2")
        a("s_nop 7")
        a(f"s_branch {top}")
        a.label(nxt)
        self.stamp(9)
        for k in range(6):
            self.dma_slot(k, ("w2", 14 + k), SRD_W2)
        a.wait(lg="all")
        a("s_barrier")
        a(f"s_lshl_b32 s{sT}, s{sC}, 15")
        a(f"s_lshl_b32 s{sT+1}, s3, 13")
        a(f"s_add_u32 s{sT}, s{sT}, s{sT+1}")
        a(f"s_add_u32 s{sT}, s{sT}, {WS_S}")
        a(f"s_add_u32 s{sT+1}, s{sT}, 4096")
        for half in range(2):
            for b in range(4*half, 4*half + 4):
                for q in range(2):
                    a.ds(f"ds_read2st64_b32 {v(Y+4*b+2*q,2)}, {v(vPr)} offset0:{b+64*q} offset1:{b+64*q+32}", ("pr", b))
            for b in range(4*half, 4*half + 4):
                a.wait(lg=("pr", b))
                a.vmem(f"buffer_store_dwordx4 {v(Y+4*b,4)}, {v(vL16)}, {srd(SRD_WS)}, s{sT+half} offen offset:{1024*(b & 3)} sc1", "sst")
        for k in range(6, 10):
            self.dma_slot(k, ("w2", 14 + k), SRD_W2)
        a.wait(vm="sst")
        self.flag_store(vSf, 8)
        a("s_barrier")
        for k in range(10, 14):
            self.dma_slot(k, ("w2", 14 + k), SRD_W2)
        self.stamp(10)

    def gemm2(self):
        a, p = self.a, self.p
        FS, R = p["FS"], p["R"]
        vXo, vSa, vSe = vTmp, vTmp + 1, vTmp + 2
        XP, SP, SE, B2 = vTmp + 4, vTmp + 12, vTmp + 20, vTmp + 22
        XF, SF = vTmp + 24, vTmp + 40
        a(f"s_lshr_b32 s{sT}, s{sX}, 1")
        a(f"s_lshl_b32 s{sT}, s{sT}, 10")
        a(f"s_mul_i32 s{sT+1}, s{sDt2}, 112")
        a(f"s_add_u32 s{sT}, s{sT}, s{sT+1}")
        a(f"s_mul_i32 s{sT+1}, s3, 28")
        a(f"s_add_u32 s{sT}, s{sT}, s{sT+1}")
        a(f"s_mul_i32 s{sT}, s{sT}, {FS}")
        a(f"s_add_u32 s{sT}, s{sT}, {WS_GF}")
        a(f"v_min_u32 {v(vPa)}, 27, {v(vLane)}")
        a(f"v_mul_u32_u24 {v(vPa)}, {FS}, {v(vPa)}")
        a(f"v_add_u32 {v(vPa)}, s{sT}, {v(vPa)}")
        self.poll_issue("poll")
        a(f"s_lshl_b32 s{sT}, s{sWm}, 10")
        a(f"v_add_u32 {v(vA0)}, s{sT}, {v(vL16)}")
        a(f"v_xor_b32 {v(vA1)}, 0x400, {v(vA0)}")
        a(f"s_mul_i32 s{sAbase}, s{sDt2}, {112*2048}")
        a(f"s_mul_i32 s{sT}, s3, {28*2048}")
        a(f"s_add_u32 s{sAbase}, s{sAbase}, s{sT}")
        a(f"s_add_u32 s{sAbase}, s{sAbase}, {WS_G}")
        a(f"s_add_u32 s{sAend}, s{sAbase}, {28*2048}")
        a(f"s_lshl_b32 s{sT}, s{sRot2}, 11")
        a(f"s_add_u32 s{sAoff}, s{sAbase}, s{sT}")
        a(f"v_and_b32 {v(vT0)}, 31, {v(vLane)}")
        a(f"v_lshrrev_b32 {v(vT1)}, 5, {v(vLane)}")
        a(f"s_lshl_b32 s{sT}, s{sTt}, 6")
        a(f"s_lshl_b32 s{sT+1}, s{sWn}, 5")
        a(f"s_add_u32 s{sT}, s{sT}, s{sT+1}")
        a(f"v_add_u32 {v(vT0)}, s{sT}, {v(vT0)}")
        a(f"s_lshl_b32 s{sT}, s{sDt2}, 3")
        a(f"s_lshl2_add_u32 s{sT}, s{sWm}, s{sT}")
        a(f"v_add_u32 {v(vT1)}, s{sT}, {v(vT1)}")
        a(f"v_lshlrev_b32 {v(vXo)}, 10, {v(vT0)}")
        a(f"v_lshl_add_u32 {v(vXo)}, {v(vT1)}, 4, {v(vXo)}")
        a(f"v_lshlrev_b32 {v(vT4)}, 1, {v(vT0)}")
        a(f"s_cmp_ge_u32 s{sDt2}, 4")
        a(f"s_cselect_b32 s{sMir}, 1, 0")
        a(f"s_cselect_b64 vcc, -1, 0")
        a(f"v_sub_u32 {v(vT2)}, 0, {v(vT0)}")
        a(f"v_and_b32 {v(vT2)}, 0x7ff, {v(vT2)}")
        a(f"v_sub_u32 {v(vT3)}, 63, {v(vT1)}")
        a(f"v_cndmask_b32 {v(vT0)}, {v(vT0)}, {v(vT2)}, vcc")
        a(f"v_cndmask_b32 {v(vT1)}, {v(vT1)}, {v(vT3)}, vcc")
        a(f"v_lshlrev_b32 {v(vSa)}, 4, {v(vT0)}")
        a(f"v_lshl_add_u32 {v(vSa)}, {v(vT1)}, 15, {v(vSa)}")
        a(f"v_add_u32 {v(vSe)}, 0x8000, {v(vSa)}")
        a(f"s_cselect_b32 s{sK0+3}, {WS_S - 65536}, s{sK0+3}")
        a(f"s_cselect_b32 s{sK0+3}, s{sK0+3}, {WS_S + 65536}")
        a(f"s_mov_b32 s{sK0+2}, {WS_S}")
        self.stamp(11)
        self.poll_check("poll")
        self.stamp(12)
        for i in range(R):
            self.act_load(i, ("act", i))
        a(f"s_lshl_b32 s{sT}, s{sDt2}, 3")
        a(f"s_sub_u32 s{sT+1}, 56, s{sT}")
        a(f"s_cmp_eq_u32 s{sMir}, 0")
        a(f"s_cselect_b32 s{sT}, s{sT}, s{sT+1}")
        a(f"s_lshl_b32 s{sT}, s{sT}, 2")
        a(f"v_min_u32 {v(vPa)}, 35, {v(vLane)}")
        a(f"v_add_u32 {v(vPa)}, s{sT}, {v(vPa)}")
        a(f"v_and_b32 {v(vPa)}, 127, {v(vPa)}")
        a(f"s_lshl_b32 s{sT}, s{sX}, 7")
        a(f"v_add_u32 {v(vPa)}, s{sT}, {v(vPa)}")
        a(f"v_mul_u32_u24 {v(vPa)}, {FS}, {v(vPa)}")
        a(f"v_add_u32 {v(vPa)}, {WS_SF}, {v(vPa)}")

        def tail(i):
            if i == 28 - R - 2:
                self.poll_issue("spoll")
            if i == 28 - R - 1:
                a.vmem(f"buffer_load_dwordx4 {v(XP,4)}, {v(vXo)}, {srd(SRD_X)}, 0 offen", "xe")
                a.vmem(f"buffer_load_dwordx4 {v(XP+4,4)}, {v(vXo)}, {srd(SRD_X)}, 0 offen offset:32", "xe")
                a.vmem(f"buffer_load_ushort {v(B2)}, {v(vT4)}, {srd(SRD_B2)}, 0 offen", "xe")
            if i == 28 - 3:
                self.poll_check("spoll")
                for k in range(2):
                    a.vmem(f"buffer_load_dwordx4 {v(SP+4*k,4)}, {v(vSa)}, {srd(SRD_WS)}, s{sK0+2+k} offen sc1", "se")
                    a.vmem(f"buffer_load_ushort {v(SE+k)}, {v(vSe)}, {srd(SRD_WS)}, s{sK0+2+k} offen sc1", "se")
        self.main_loop(28, 14, 1024, False, tail)
        self.stamp(13)

        def mid():
            a.wait(vm="xe")
            for k in range(8):
                self.unpack(XF + 2*k, XF + 2*k + 1, XP + k)
            a(f"v_lshlrev_b32 {v(B2)}, 16, {v(B2)}")
            a.wait(vm="se")
            d = self.lab("direct")
            a(f"s_cmp_eq_u32 s{sMir}, 0")
            a(f"s_cbranch_scc1 {d}")
            for k in range(2):
                P = SP + 4*k
                a(f"v_bfi_b32 {v(SE+k)}, s{sMask}, {v(P+3)}, {v(SE+k)}")
                a(f"v_bfi_b32 {v(XP)}, s{sMask}, {v(P+2)}, {v(P+3)}")
                a(f"v_bfi_b32 {v(P+3)}, s{sMask}, {v(P)}, {v(P+1)}")
                a(f"v_bfi_b32 {v(P+2)}, s{sMask}, {v(P+1)}, {v(P+2)}")
                a(f"v_mov_b32 {v(P)}, {v(SE+k)}")
                a(f"v_mov_b32 {v(P+1)}, {v(XP)}")
            a.label(d)
            for k in range(8):
                self.unpack(SF + 2*k, SF + 2*k + 1, SP + k)
        self.reduce_scatter(mid)
        for j in (0, 8):
            for i in range(4):
                a(f"v_permlane32_swap_b32 {v(vAcc+j+i)}, {v(vAcc+j+4+i)}")
        a(f"s_mov_b32 s{sK0}, {hexf(-1.4426950408889634)}")
        E, P = vAcc + 16, vAcc + 32
        mim = p["mimic"]

        def rnd(regs):
            for k, r in enumerate(regs):
                a(f"v_cvt_pk_bf16_f32 {v(P+k)}, {v(r)}, {v(r+1)}")
            for k, r in enumerate(regs):
                self.unpack(r, r + 1, P + k)

        for q in range(2):
            prs = [vAcc + 8*q + 2*k for k in range(4)]
            es = [E + 2*k for k in range(4)]
            if mim:
                rnd(prs)
            for r in prs:
                a(f"v_pk_add_f32 {v(r,2)}, {v(r,2)}, {v(B2,2)} {LO}")
            if mim:
                rnd(prs)
            for r, e in zip(prs, es):
                a(f"v_pk_mul_f32 {v(e,2)}, {v(r,2)}, s[{sK0}:{sK0+1}] op_sel_hi:[1,0]")
            for k in range(8):
                a(f"v_exp_f32 {v(E+k)}, {v(E+k)}")
            for e in es:
                a(f"v_pk_add_f32 {v(e,2)}, {v(e,2)}, 1.0 op_sel_hi:[1,0]")
            for k in range(8):
                a(f"v_rcp_f32 {v(E+k)}, {v(E+k)}")
            for r, e in zip(prs, es):
                a(f"v_pk_mul_f32 {v(e,2)}, {v(e,2)}, {v(r,2)}")
            if mim:
                rnd(es)
                for k, e in enumerate(es):
                    a(f"v_pk_mul_f32 {v(e,2)}, {v(e,2)}, {v(SF+8*q+2*k,2)}")
                rnd(es)
                for k, e in enumerate(es):
                    a(f"v_pk_add_f32 {v(e,2)}, {v(e,2)}, {v(XF+8*q+2*k,2)}")
            else:
                for k, e in enumerate(es):
                    a(f"v_pk_fma_f32 {v(e,2)}, {v(e,2)}, {v(SF+8*q+2*k,2)}, {v(XF+8*q+2*k,2)}")
            for k, e in enumerate(es):
                a(f"v_cvt_pk_bf16_f32 {v(P+4+4*q+k)}, {v(e)}, {v(e+1)}")
            a.vmem(f"buffer_store_dwordx4 {v(P+4+4*q,4)}, {v(vXo)}, {srd(SRD_OUT)}, 0 offen offset:{32*q}", "out")
        self.stamp(14)
        if p["cal"] is not None:
            a.wait(vm="all")
            self.stamp(15)
            a(f"s_add_u32 s{sT}, s{sStamp + p['cal']}, 4000")
            a.label("L_cal")
            a(f"s_memrealtime s[{sClk}:{sClk+1}]")
            a("s_waitcnt lgkmcnt(0)")
            a(f"s_sub_u32 s{sT+1}, s{sClk}, s{sT}")
            a(f"s_cmp_lt_i32 s{sT+1}, 0")
            a("s_cbranch_scc1 L_cal")
        elif p["stamps"]:
            a.wait(vm="all")
            self.stamp(15)
            a(f"s_lshl2_add_u32 s{sT}, s2, s3")
            a(f"s_lshl_b32 s{sT}, s{sT}, 6")
            a(f"s_add_u32 s{sT}, s{sT}, {WS_STAMP}")
            a(f"v_mov_b32 {v(vT0)}, 0")
            for k in range(16):
                a(f"v_mov_b32 {v(vAcc+k)}, s{sStamp+k}")
            a("s_mov_b64 exec, 1")
            for k in range(4):
                a(f"buffer_store_dwordx4 {v(vAcc+4*k,4)}, {v(vT0)}, {srd(SRD_WS)}, s{sT} offen offset:{16*k}")

    def build(self):
        a = self.a
        a.label(KERNEL)
        self.prologue()
        self.phase0()
        snap = a.snapshot()
        a(f"s_cmp_ge_u32 s{sIdx}, 28")
        a("s_cbranch_scc1 L_fft")
        self.gemm1()
        a.label("L_join")
        a.vm, a.lg = ["old"], [("tr", 13)]
        a.wait(lg="all")
        self.gemm2()
        a("s_endpgm")
        a.label("L_fft")
        a.restore(snap)
        self.fft()
        a("s_branch L_join")
        a.label("L_end")
        a("s_endpgm")
        body = a.finish()
        head = open("cdna_kernels/" + NAME + ".s.ref").read().split("; Override launch")[0]
        out = [head.rstrip(),
               "; Generated by gen/gen.py: LN + hidden FFT -> GEMM1 | sequence FFT -> GEMM2 + gate, one persistent launch.",
               f"; @launch grid=(256,1,1) block=(256,1,1) lds={LDS_BYTES}",
               '.amdgcn_target "amdgcn-amd-amdhsa--gfx950"', ".text", f".globl {KERNEL}", ".p2align 8",
               f".type {KERNEL},@function"] + body + [
               '.section .rodata,"a"', ".p2align 6", f".amdhsa_kernel {KERNEL}",
               "  .amdhsa_next_free_vgpr 512", "  .amdhsa_next_free_sgpr 102", "  .amdhsa_accum_offset 256",
               "  .amdhsa_group_segment_fixed_size 0", "  .amdhsa_kernarg_size 104", "  .amdhsa_user_sgpr_count 2",
               "  .amdhsa_user_sgpr_kernarg_segment_ptr 1", "  .amdhsa_system_sgpr_workgroup_id_x 1",
               "  .amdhsa_float_denorm_mode_32 3", ".end_amdhsa_kernel", ""]
        return "\n".join(out)


def parse(args):
    kw = {}
    for s in args:
        k, val = s.split("=", 1)
        try:
            val = eval(val)
        except Exception:
            pass
        kw[k] = val
    return kw


if __name__ == "__main__":
    path = sys.argv[1]
    open(path, "w").write(Gen(**parse(sys.argv[2:])).build())
```
